```python
import torch

def _softmax(x, axis=-1):
    return torch.softmax(x, dim=axis)
def _gelu(x):
    return torch.nn.functional.gelu(x, approximate="tanh")
def _silu(x):
    return torch.nn.functional.silu(x)
def _sigmoid(x):
    return torch.sigmoid(x)
def _layernorm(x, axis=-1, eps=1e-5):
    m = x.mean(dim=axis, keepdim=True)
    v = x.var(dim=axis, keepdim=True, unbiased=False)
    return (x - m) / torch.sqrt(v + eps)
def _scatter_add(tgt, idx, src, axis=0):
    return tgt.clone().index_add_(axis, idx, src)
def _segment_sum(src, seg, n):
    out = torch.zeros((n,) + src.shape[1:], dtype=src.dtype)
    return out.index_add_(0, seg, src)
def _pad(x, pw):
    flat = tuple(v for pair in reversed(pw) for v in pair)
    return torch.nn.functional.pad(x, flat)

kernel_name = 'interleave_layers__sliding_block__dense_activation_silu__prompt'

def setup_inputs():

    _w = (lambda a: (lambda t: t.to(torch.bfloat16) if t.is_floating_point() else t)(torch.as_tensor(a)))
    def _A_setup():
        B, S, D = 1, 2048, 640
        return {
            "x": _w((lambda *s: torch.randn(*s, dtype=torch.bfloat16) * 0.05)(B, S, D)),
            "wqkv": _w((lambda *s: torch.randn(*s, dtype=torch.bfloat16) * 0.05)(D, 3 * D)),
            "wo": _w((lambda *s: torch.randn(*s, dtype=torch.bfloat16) * 0.05)(D, D)),
        }
    _A_in = _A_setup()

    def _B_setup():
        B, S, D, F = 1, 2048, 640, 1728
        return {
            "x": _w((lambda *s: torch.randn(*s, dtype=torch.bfloat16) * 0.05)(B, S, D)),
            "w1": _w((lambda *s: torch.randn(*s, dtype=torch.bfloat16) * 0.8)(D, F) * (D ** -0.5)),
            "w2": _w((lambda *s: torch.randn(*s, dtype=torch.bfloat16) * 0.8)(F, D) * (F ** -0.5)),
        }
    _B_in = _B_setup()

    return {
        "A_x": _A_in["x"],
        "A_wqkv": _A_in["wqkv"],
        "A_wo": _A_in["wo"],
        "B_x": _B_in["x"],
        "B_w1": _B_in["w1"],
        "B_w2": _B_in["w2"],
    }

def reference(A_x, A_wqkv, A_wo, B_x, B_w1, B_w2):
    def _A_ref(x, wqkv, wo):
        B, S, D = x.shape
        H = 32; Dh = D // H; W = 256
        qkv = (lambda x, *d: x.permute(*d))((x @ wqkv).reshape(B, S, 3, H, Dh), 2, 0, 3, 1, 4)
        q, k, v = qkv[0], qkv[1], qkv[2]
        scores = torch.einsum("bhqd,bhkd->bhqk", q, k) * (Dh ** -0.5)
        idx = torch.arange(S)
        mask = (idx[:, None] - idx[None, :] >= 0) & (idx[:, None] - idx[None, :] < W)
        scores = torch.where(mask[None, None], scores, -1e9)
        p = _softmax(scores, axis=-1)
        o = torch.einsum("bhqk,bhkd->bhqd", p, v)
        return (lambda x, *d: x.permute(*d))(o, 0, 2, 1, 3).reshape(B, S, D) @ wo

    def _B_ref(x, w1, w2):
        h = torch.einsum("bsd,df->bsf", x, w1)
        h = _silu(h)
        out = torch.einsum("bsf,fd->bsd", h, w2)
        return out

    x = A_x
    x = x + _A_ref(_layernorm(x, axis=-1), A_wqkv, A_wo)
    x = x + _B_ref(_layernorm(x, axis=-1), B_w1, B_w2)
    x = x + _A_ref(_layernorm(x, axis=-1), A_wqkv, A_wo)
    x = x + _B_ref(_layernorm(x, axis=-1), B_w1, B_w2)
    return x
```

```python
class Asm:
    def __init__(self):
        self.lines = []
    def __call__(self, s=""):
        for l in s.split("\n"):
            self.lines.append(l)
    def text(self):
        return "\n".join(self.lines) + "\n"

def header(launch_lines):
    return "\n".join(launch_lines) + '\n.amdgcn_target "amdgcn-amd-amdhsa--gfx950"\n.text\n'

def kernel_begin(name):
    return f".globl {name}\n.p2align 8\n.type {name},@function\n{name}:\n"

def descriptor(name, vgpr, agpr=0, sgpr=102, kernarg=72):
    acc = (vgpr + 3) // 4 * 4
    nfv = acc + agpr if agpr else vgpr
    return (f'.p2align 6\n.amdhsa_kernel {name}\n  .amdhsa_next_free_vgpr {nfv}\n  .amdhsa_next_free_sgpr {sgpr}\n'
            f'  .amdhsa_accum_offset {acc}\n  .amdhsa_group_segment_fixed_size 0\n  .amdhsa_kernarg_size {kernarg}\n'
            f'  .amdhsa_user_sgpr_count 2\n  .amdhsa_user_sgpr_kernarg_segment_ptr 1\n'
            f'  .amdhsa_system_sgpr_workgroup_id_x 1\n.end_amdhsa_kernel\n')

RODATA = '.section .rodata,"a"\n'
```

```python
from asmlib import *
import sys

def make(name, body, threads, vgpr=128):
    a = Asm()
    a(header([f"; @launch grid=(256,1,1) block=({threads},1,1) lds=0"]))
    a(kernel_begin("b_kernel"))
    a(f"""
    s_load_dwordx2 s[4:5], s[0:1], 0
    v_lshrrev_b32 v1, 6, v0
    s_nop 1
    v_readfirstlane_b32 s3, v1
    s_waitcnt lgkmcnt(0)
    s_mov_b32 s8, s4
    s_mov_b32 s9, s5
    s_mov_b32 s10, 0x100000
    s_mov_b32 s11, 0x00020000
    s_lshl_b32 s12, s2, 4
    s_add_u32 s12, s12, s3
    s_lshl_b32 s12, s12, 5
    """)
    for i in range(2, vgpr):
        a(f"v_mov_b32 v{i}, 0x3c003c00")
    a("""
    s_mov_b32 s13, 0
    s_barrier
L_loop:
    s_memtime s[16:17]
    s_waitcnt lgkmcnt(0)
    """)
    a(body)
    a("""
    s_memtime s[18:19]
    s_waitcnt lgkmcnt(0)
    s_sub_u32 s20, s18, s16
    v_mov_b32 v1, s20
    v_mov_b32 v0, 0
    buffer_store_dword v1, v0, s[8:11], s12 offen
    s_add_u32 s12, s12, 4
    s_add_u32 s13, s13, 1
    s_cmp_lt_u32 s13, 3
    s_cbranch_scc1 L_far
    s_endpgm
L_far:
    s_getpc_b64 s[22:23]
L_pc:
    s_sub_u32 s22, s22, L_pc-L_loop
    s_subb_u32 s23, s23, 0
    s_setpc_b64 s[22:23]
    """)
    a(RODATA)
    a(descriptor("b_kernel", vgpr))
    open(f"b1_{name}.s", "w").write(a.text())

def rep(f, n):
    return "\n".join(f(i) for i in range(n))

M32 = lambda i: f"v_mfma_f32_32x32x16_bf16 v[{64+16*(i%2)}:{79+16*(i%2)}], v[8:11], v[12:15], v[{64+16*(i%2)}:{79+16*(i%2)}]"
M16 = lambda i: f"v_mfma_f32_16x16x32_bf16 v[{64+4*(i%4)}:{67+4*(i%4)}], v[8:11], v[12:15], v[{64+4*(i%4)}:{67+4*(i%4)}]"
bodies = {
 "fma8": rep(lambda i: f"v_fma_f32 v{16+i%16}, v2, v3, v{16+i%16}", 2048),
 "add4": rep(lambda i: f"v_add_f32 v{16+i%16}, v2, v{16+i%16}", 2048),
 "exp4": rep(lambda i: f"v_exp_f32 v{16+i%16}, v2", 2048),
 "cvt8": rep(lambda i: f"v_cvt_pk_bf16_f32 v{16+i%16}, v2, v3", 2048),
 "pkmul": rep(lambda i: f"v_pk_mul_f32 v[{16+2*(i%8)}:{17+2*(i%8)}], v[2:3], v[4:5]", 2048),
 "mfma32": rep(M32, 1024),
 "mfma16": rep(M16, 1024),
 "attn": rep(lambda i: M32(i) + "\n" + rep(lambda j: f"v_exp_f32 v{16+(4*i+j)%16}, v2", 4) + "\n" +
              rep(lambda j: f"v_cvt_pk_bf16_f32 v{32+(2*i+j)%16}, v2, v3", 2), 512),
 "m32_3fma": rep(lambda i: M32(i) + "\n" + rep(lambda j: f"v_fma_f32 v{16+(3*i+j)%16}, v2, v3, v4", 3), 1024),
}
names = []
for n, b in bodies.items():
    for t in (256, 512):
        make(f"{n}_{t}", b, t)
        names.append(f"{n}_{t}")
open("b1_names.txt", "w").write("\n".join(names))
```

```python
import b1_gen
from b1_gen import rep
from asmlib import *

def make(name, body, threads=256, vgpr=128):
    a = Asm()
    a(header([f"; @launch grid=(256,1,1) block=({threads},1,1) lds=131072"]))
    a(kernel_begin("b_kernel"))
    a(f"""
    s_load_dwordx2 s[4:5], s[0:1], 0
    v_lshrrev_b32 v1, 6, v0
    s_nop 1
    v_readfirstlane_b32 s3, v1
    s_waitcnt lgkmcnt(0)
    s_mov_b32 s8, s4
    s_mov_b32 s9, s5
    s_mov_b32 s10, 0x100000
    s_mov_b32 s11, 0x00020000
    s_lshl_b32 s12, s2, 4
    s_add_u32 s12, s12, s3
    s_lshl_b32 s12, s12, 5
    """)
    for i in range(2, vgpr):
        a(f"v_mov_b32 v{i}, 0x3c003c00")
    a("""
    v_and_b32 v6, 63, v0
    v_lshlrev_b32 v7, 3, v6
    v_lshlrev_b32 v6, 4, v6
    s_mov_b32 s13, 0
    s_barrier
    .p2align 3
L_loop:
    s_memtime s[16:17]
    s_waitcnt lgkmcnt(0)
    s_nop 0
    """)
    a(body)
    a("""
    s_waitcnt lgkmcnt(0)
    s_memtime s[18:19]
    s_waitcnt lgkmcnt(0)
    s_sub_u32 s20, s18, s16
    v_mov_b32 v1, s20
    v_mov_b32 v0, 0
    buffer_store_dword v1, v0, s[8:11], s12 offen
    s_add_u32 s12, s12, 4
    s_add_u32 s13, s13, 1
    s_cmp_lt_u32 s13, 3
    s_cbranch_scc1 L_loop
    s_endpgm
    """)
    a(RODATA)
    a(descriptor("b_kernel", vgpr, 128))
    open(f"b1_{name}.s", "w").write(a.text())

M32 = lambda i: f"v_mfma_f32_32x32x16_bf16 v[{64+16*(i%2)}:{79+16*(i%2)}], v[8:11], v[12:15], v[{64+16*(i%2)}:{79+16*(i%2)}]"
M8 = lambda i: f"v_mfma_f32_32x32x8_bf16 v[{64+16*(i%2)}:{79+16*(i%2)}], v[8:9], v[12:13], v[{64+16*(i%2)}:{79+16*(i%2)}]"
M16 = lambda i: f"v_mfma_f32_16x16x32_bf16 v[{64+4*(i%5)}:{67+4*(i%5)}], v[8:11], v[12:15], v[{64+4*(i%5)}:{67+4*(i%5)}]"
EXP = lambda j: f"v_exp_f32 v{16+j%16}, v2"
CVT = lambda j: f"v_cvt_pk_bf16_f32 v{32+j%16}, v2, v3"
TR = lambda j: f"ds_read_b64_tr_b16 a[{2*(j%16)}:{2*(j%16)+1}], v7 offset:{512*(j%32)}"
R128 = lambda j: f"ds_read_b128 a[{4*(j%16)}:{4*(j%16)+3}], v6 offset:{1024*(j%32)}"
N = 256
def attn(i, extra):
    return "\n".join([M32(i), EXP(4*i), EXP(4*i+1)] + extra[:1] + [EXP(4*i+2), EXP(4*i+3)] + extra[1:] + [CVT(2*i), CVT(2*i+1)])
def attn2(i, extra):
    return "\n".join([M32(i)] + extra[:1] + [EXP(4*i), EXP(4*i+1), EXP(4*i+2), EXP(4*i+3), CVT(2*i)] + extra[1:] + [CVT(2*i+1)])
def silu(j):
    return [f"v_mul_f32 v{16+j%8}, v2, v3", f"v_exp_f32 v{24+j%8}, v2", f"v_fma_f32 v{32+j%8}, v2, v3, v4", f"v_rcp_f32 v{40+j%8}, v2", f"v_mul_f32 v{48+j%8}, v2, v3"]
def silupk(j):
    r = 2*(j%4)
    return [f"v_pk_mul_f32 v[{16+r}:{17+r}], v[2:3], v[4:5]", f"v_exp_f32 v{24+r}, v2", f"v_exp_f32 v{25+r}, v2", f"v_pk_fma_f32 v[{32+r}:{33+r}], v[2:3], v[4:5], v[2:3]",
            f"v_rcp_f32 v{40+r}, v2", f"v_rcp_f32 v{41+r}, v2", f"v_pk_mul_f32 v[{48+r}:{49+r}], v[2:3], v[4:5]", CVT(j)]
bodies = {
 "m8": rep(M8, N),
 "m8_6add": rep(lambda i: M8(i) + "\n" + rep(lambda j: f"v_add_f32 v{16+j}, v2, v3", 2), N),
 "attn0": rep(lambda i: attn(i, []), N),
 "attn_m8": rep(lambda i: attn(i, []).replace(M32(i), M8(i)), N),
 "attn_1tr": rep(lambda i: attn(i, [TR(i)]), N),
 "attn_2tr": rep(lambda i: attn(i, [TR(2*i), TR(2*i+1)]), N),
 "attn2_2tr": rep(lambda i: attn2(i, [TR(2*i), TR(2*i+1)]), N),
 "attn_2salu": rep(lambda i: attn(i, ["s_add_u32 s30, s30, 1", "s_add_u32 s31, s31, 1"]), N),
 "attn_2wait": rep(lambda i: attn(i, ["s_waitcnt lgkmcnt(0)", "s_waitcnt vmcnt(0)"]), N),
 "m32_r128": rep(lambda i: M32(i) + "\n" + R128(i) + "\ns_waitcnt lgkmcnt(4)\ns_nop 0", N),
 "m32_r128_dep": rep(lambda i: f"s_waitcnt lgkmcnt(4)\ns_nop 0\nv_mfma_f32_32x32x16_bf16 v[{64+16*(i%2)}:{79+16*(i%2)}], a[{4*((i+11)%16)}:{4*((i+11)%16)+3}], v[12:15], v[{64+16*(i%2)}:{79+16*(i%2)}]\n" + R128(i), N),
 "silu_alone": rep(lambda i: "\n".join(silu(2*i) + silu(2*i+1) + [CVT(i)]), N),
 "silupk_alone": rep(lambda i: "\n".join(silupk(i)), N),
 "silu_3m": rep(lambda i: "\n".join([M32(0)] + silu(2*i)[:4] + [M32(0)] + silu(2*i)[4:] + silu(2*i+1)[:3] + [M32(0)] + silu(2*i+1)[3:] + [CVT(i)]), N),
 "silupk_2m": rep(lambda i: "\n".join([M32(0)] + silupk(i)[:4] + [M32(0)] + silupk(i)[4:]), N),
 "silupk_3m": rep(lambda i: "\n".join([M32(0)] + silupk(i)[:3] + [M32(0)] + silupk(i)[3:5] + [M32(0)] + silupk(i)[5:]), N),
 "dot2": rep(lambda i: f"v_dot2_f32_bf16 v{16+i%4}, v2, v3, v{16+i%4}", 4*N),
 "dot2c": rep(lambda i: f"v_dot2c_f32_bf16 v{16+i%4}, v2, v3", 4*N),
 "m16_2add": rep(lambda i: M16(i) + "\n" + rep(lambda j: f"v_add_f32 v{16+j}, v2, v3", 2), N),
 "m16_1add": rep(lambda i: M16(i) + "\n" + rep(lambda j: f"v_fma_f32 v{16+j}, v2, v3, v4", 1), N),
 "m16_2salu": rep(lambda i: M16(i) + "\ns_add_u32 s30, s30, 1\ns_waitcnt vmcnt(0)", N),
 "m16_3mix": rep(lambda i: M16(i) + "\ns_add_u32 s30, s30, 1\ns_waitcnt vmcnt(0)\nv_fma_f32 v16, v2, v3, v4", N),
 "m32_w128": rep(lambda i: M16(i) + "\n" + M16(i+1) + f"\nds_write_b128 v6, v[16:19] offset:{1024*(i%32)}", N),
}
names = []
for n, b in bodies.items():
    make(n, b); names.append(n)
open("b1_names.txt", "w").write("\n".join(names))
```

```python
from b8_gen import *
W = "s_waitcnt lgkmcnt(8)"
def unit(i, e64=False, mis=False):
    E = lambda q, wide=False: [(f"v_exp_f32_e64 v{16+4*q}, v2" if wide else EXP(4*q))] + [EXP(4*q+j) for j in (1,2,3)] + [CVT(2*q), CVT(2*q+1)]
    return "\n".join([M32(0), W, R128(i)] + E(0, e64) + [M8(0)] + E(1) + [M32(1), W, TR(2*i), TR(2*i+1)] + E(2, e64) + [M32(1), TR(2*i+2), TR(2*i+3)] + E(3))
def sil(j):
    return [f"v_mul_f32 v16, v2, v3", f"v_mul_f32 v17, v2, v3", "v_exp_f32 v24, v2", "v_exp_f32 v25, v2", "v_fma_f32 v32, v2, v3, v4", "v_fma_f32 v33, v2, v3, v4",
            "v_rcp_f32 v40, v2", "v_rcp_f32 v41, v2", "v_mul_f32 v48, v2, v3", "v_mul_f32 v49, v2, v3", CVT(j)]
def p4beat(i, mode):
    s = sil(i)
    parts = [s[0:3], s[3:7], s[7:11]]
    o = []
    for b in range(3):
        if mode == "before": o += ["s_waitcnt lgkmcnt(5)", M32(0), R128(3*i+b)] + parts[b]
        if mode == "after": o += [M32(0), "s_waitcnt lgkmcnt(4)", R128(3*i+b)] + parts[b]
        if mode == "third": o += [M32(0)] + (["s_waitcnt lgkmcnt(2)"] if b == 0 else []) + [R128(3*i+b)] + parts[b]
    return "\n".join(o)
LD = lambda j: f"buffer_load_dwordx4 a[{64+4*(j%8)}:{67+4*(j%8)}], v6, s[8:11], 0 offen offset:{1024*(j%4)}"
def p5k(i, mode):
    m = [M16(t) for t in range(5)]
    if mode == "a": return "\n".join(["s_waitcnt vmcnt(6)", m[0], "s_add_u32 s30, s30, 0x1000", LD(i), m[1], m[2], m[3], m[4]])
    if mode == "b": return "\n".join([m[0], LD(i), m[1], m[2], "s_add_u32 s30, s30, 0x1000", m[3], m[4], "s_waitcnt vmcnt(6)"])
    if mode == "c": return "\n".join([m[0], LD(i), m[1], m[2], m[3], "s_waitcnt vmcnt(6)", m[4]])
    if mode == "n": return "\n".join(m)
bodies = {
 "unit": rep(lambda i: unit(i), 64),
 "unit_e64": rep(lambda i: unit(i, True), 64),
 "unit_mis": "s_nop 0\n" + rep(lambda i: unit(i, True), 64),
 "p4_before": rep(lambda i: p4beat(i, "before"), 128),
 "p4_after": rep(lambda i: p4beat(i, "after"), 128),
 "p4_third": rep(lambda i: p4beat(i, "third"), 128),
 "p5_a": rep(lambda i: p5k(i, "a"), 128) + "\ns_waitcnt vmcnt(0)",
 "p5_b": rep(lambda i: p5k(i, "b"), 128) + "\ns_waitcnt vmcnt(0)",
 "p5_c": rep(lambda i: p5k(i, "c"), 128) + "\ns_waitcnt vmcnt(0)",
 "p5_n": rep(lambda i: p5k(i, "n"), 128),
}
names = []
for n, b in bodies.items():
    make(n, b); names.append(n)
open("b1_names.txt", "w").write("\n".join(names))
```

```python
import re

REG_RE = re.compile(r"\b([vas])(\d+)\b|\b([vas])\[(\d+):(\d+)\]|\b(vcc|exec|m0)(?:_lo|_hi)?\b")
TRANS = ("v_exp_f32", "v_log_f32", "v_rcp_f32", "v_rsq_f32", "v_sqrt_f32", "v_sin_f32", "v_cos_f32")


def regs_of(op):
    out = []
    for m in REG_RE.finditer(op):
        if m.group(1):
            out.append((m.group(1), int(m.group(2))))
        elif m.group(3):
            out += [(m.group(3), i) for i in range(int(m.group(4)), int(m.group(5)) + 1)]
        else:
            out.append((m.group(6), 0))
    return out


def split_ops(rest):
    ops, depth, cur = [], 0, ""
    for ch in rest:
        if ch in "[(":
            depth += 1
        if ch in "])":
            depth -= 1
        if ch == "," and depth == 0:
            ops.append(cur.strip())
            cur = ""
        else:
            cur += ch
    if cur.strip():
        ops.append(cur.strip())
    return ops


class Ins:
    __slots__ = ("text", "op", "kind", "dst", "src", "srcc", "npass", "tok", "wide", "meta")

    def __init__(self, text, kind=None, meta=None):
        self.text = text
        self.meta = meta
        self.tok = None
        self.dst, self.src, self.srcc, self.npass, self.wide = set(), set(), None, 0, False
        if kind:
            self.kind, self.op = kind, ""
            return
        t = text.strip()
        if t.endswith(":"):
            self.kind, self.op = "label", ""
            return
        if t.startswith(".") or t.startswith(";"):
            self.kind, self.op = "dir", ""
            return
        parts = t.split(None, 1)
        op = self.op = parts[0]
        ops = split_ops(parts[1]) if len(parts) > 1 else []
        R = [regs_of(o) for o in ops]
        flat = lambda xs: set(r for x in xs for r in x)
        if op.startswith("v_mfma"):
            self.kind = "mfma"
            self.npass = 8 if "32x32" in op else 4
            self.dst, self.src = set(R[0]), flat(R[1:])
            self.srcc = tuple(R[3])
        elif op.startswith("v_"):
            self.kind = "valu"
            self.dst, self.src = set(R[0]), flat(R[1:])
            if "swap" in op:
                self.dst = self.src = flat(R)
            if op.startswith(("v_fmac", "v_dot2c")):
                self.src |= self.dst
        elif op.startswith("ds_read"):
            self.kind = "ldsr"
            self.dst, self.src = set(R[0]), flat(R[1:])
        elif op.startswith("ds_write"):
            self.kind = "ldsw"
            self.src = flat(R)
        elif op.startswith(("buffer_load", "global_load")):
            if re.search(r"\blds\b", t):
                self.kind = "dma"
                self.src = flat(R) | {("m0", 0)}
            else:
                self.kind = "vld"
                self.dst, self.src = set(R[0]), flat(R[1:])
        elif op.startswith("buffer_store"):
            self.kind = "vst"
            self.src = flat(R)
            self.wide = op.endswith(("x3", "x4"))
            self.meta = set(R[0])
        elif op.startswith(("s_load", "s_memtime", "s_memrealtime")):
            self.kind = "smem"
            self.dst, self.src = set(R[0]), flat(R[1:])
        elif op == "s_waitcnt":
            self.kind = "wait"
        elif op == "s_nop":
            self.kind = "nop"
        elif op.startswith(("s_cbranch", "s_branch", "s_endpgm", "s_setpc")):
            self.kind = "branch"
            self.src = flat(R)
        elif op.startswith(("s_cmp", "s_bitcmp", "s_barrier", "s_sleep", "s_setprio")):
            self.kind = "salu"
            self.src = flat(R)
        elif op.startswith("s_"):
            self.kind = "salu"
            self.dst, self.src = set(R[0]), flat(R[1:])
        else:
            raise ValueError("unknown instruction: " + text)

    def states(self):
        if self.kind == "nop":
            return int(self.text.split()[1]) + 1
        if self.kind in ("label", "dir", "touch"):
            return 0
        return 1


def I(text):
    return Ins(text)


def wait_vm(ins):
    return Ins("", "wantvm", ins)


def wait_lg(ins):
    return Ins("", "wantlg", ins)


def sync_point():
    return Ins("", "reset")


class Prog:
    def __init__(self):
        self.ins = []
        self.tail = []

    def __call__(self, x):
        last = None
        if isinstance(x, Ins):
            self.ins.append(x)
            return x
        if isinstance(x, (list, tuple)):
            for y in x:
                last = self(y)
            return last
        for line in x.split("\n"):
            line = line.strip()
            if line:
                last = Ins(line)
                self.ins.append(last)
        return last

    def resolve_waits(self):
        out, vm, lg, smem = [], [], [], set()

        def emit(nv, nl):
            s = []
            if nv is not None:
                s.append(f"vmcnt({min(nv, 63)})")
                del vm[: len(vm) - min(nv, 63)]
            if nl is not None:
                s.append(f"lgkmcnt({min(nl, 15)})")
                del lg[: len(lg) - min(nl, 15)]
                if nl == 0:
                    smem.clear()
            if s:
                if out and out[-1].kind == "wait" and out[-1].meta == "auto":
                    old = dict(re.findall(r"(\w+)\((\d+)\)", out.pop().text))
                    old.update(re.findall(r"(\w+)\((\d+)\)", " ".join(s)))
                    s = [f"{k}({v})" for k, v in sorted(old.items(), reverse=True)]
                out.append(Ins("s_waitcnt " + " ".join(s), meta="auto"))

        def need(q, pred):
            for i in range(len(q) - 1, -1, -1):
                if pred(q[i]):
                    return len(q) - 1 - i
            return None

        for x in self.ins:
            if x.kind == "wantvm":
                emit(need(vm, lambda y: y is x.meta), None)
                continue
            if x.kind == "wantlg":
                n = need(lg, lambda y: y is x.meta)
                emit(None, 0 if (n is not None and smem) else n)
                continue
            if x.kind == "reset":
                assert not any(y.dst for y in vm) and not any(y.dst for y in lg) and not smem, "loads pending at a join"
                vm.clear()
                lg.clear()
                continue
            if x.kind == "wait":
                m = re.search(r"vmcnt\((\d+)\)", x.text)
                if m:
                    del vm[: max(0, len(vm) - int(m.group(1)))]
                m = re.search(r"lgkmcnt\((\d+)\)", x.text)
                if m:
                    del lg[: max(0, len(lg) - int(m.group(1)))]
                    if int(m.group(1)) == 0:
                        smem.clear()
                out.append(x)
                continue
            touch = x.src | x.dst
            if touch:
                tv = x.src if x.kind == "vld" else touch
                tl = x.src if x.kind == "ldsr" else touch
                nv = need(vm, lambda y: y.dst & tv)
                nl = need(lg, lambda y: y.dst & tl)
                if smem & (x.src if x.kind == 'smem' else touch) or (nl is not None and smem):
                    nl = 0
                emit(nv, nl)
            out.append(x)
            if x.kind in ("vld", "vst", "dma"):
                vm.append(x)
            elif x.kind in ("ldsr", "ldsw"):
                lg.append(x)
            elif x.kind == "smem":
                smem |= x.dst
        self.ins = out

    @staticmethod
    def required(p, c):
        n = 0
        isv = lambda s: set(r for r in s if r[0] in "va" and len(r[0]) == 1)
        iss = lambda s: set(r for r in s if r[0] in ("s", "vcc"))
        mem = c.kind in ("vld", "vst", "dma", "ldsr", "ldsw", "touch")
        if p.kind == "mfma":
            big = p.npass == 8
            if c.kind == "mfma":
                ab = c.src - set(c.srcc)
                if p.dst & ab:
                    n = max(n, 12 if big else 8)
                if p.dst & set(c.srcc) and not (p.dst == set(c.srcc) and p.npass == c.npass):
                    n = max(n, 10 if big else 6)
                if p.dst & c.dst and not p.dst & set(c.srcc):
                    n = max(n, 10 if big else 6)
            elif (c.kind == "valu" or mem) and p.dst & (c.src | c.dst):
                n = max(n, 12 if big else 8)
            if (c.kind == "valu" or mem) and set(p.srcc) & c.dst:
                n = max(n, 7 if big else 3)
        if p.kind == "valu":
            pv, ps = isv(p.dst), iss(p.dst)
            if c.kind == "mfma" and pv & c.src:
                n = max(n, 2)
            if c.kind in ("vld", "vst", "dma", "touch") and ps & c.src:
                n = max(n, 5)
            if c.kind == "valu":
                if ps & c.src:
                    n = max(n, 4 if "lane" in c.op else 2)
                if pv & c.src:
                    if c.op.startswith(("v_readfirstlane", "v_readlane")):
                        n = max(n, 1)
                    if "permlane" in c.op or "dpp" in c.op:
                        n = max(n, 2)
                    if p.op.startswith(TRANS):
                        n = max(n, 1)
            if p.op.startswith("v_dot") and pv & (c.src | c.dst):
                same_acc = c.op == p.op and c.dst == p.dst
                if not same_acc:
                    n = max(n, 3)
            if c.kind in ("salu", "branch") and (ps & c.src or (("vcc", 0) in ps and "vcc" in c.op)):
                n = max(n, 1)
        if p.kind == "vst" and p.wide and p.meta & c.dst:
            n = max(n, 2 if c.kind in ("valu", "mfma") else 1)
        if p.kind == "salu" and ("m0", 0) in p.dst and c.kind == "dma":
            n = max(n, 1)
        return n

    def pad_hazards(self):
        out, added = [], 0
        for c in self.ins:
            if c.kind not in ("label", "dir", "nop", "wait"):
                dist, pad = 0, 0
                for p in reversed(out):
                    if dist >= 12:
                        break
                    pad = max(pad, self.required(p, c) - dist)
                    dist += p.states()
                if pad > 0:
                    out.append(Ins(f"s_nop {pad - 1}"))
                    added += pad
            out.append(c)
        self.ins = out
        return added

    def text(self):
        lines = []
        for x in self.ins + self.tail:
            lines.append(x.text if x.kind in ("label", "dir") else "    " + x.text)
        return "\n".join(lines) + "\n"
```

```python
import math
import struct
import sys
from emit import Ins, I, Prog, wait_vm, wait_lg, sync_point

NAME = "interleave_layers__sliding_block__dense_activation_silu__prompt"
OPT = dict(probe=0, nob=0, stop=99, stamps=0, force_slow=0, force_fallback=0)

WQ_SL, W1_SL, WO_SL, W2_SL = 153600, 143360, 25600, 71680
KV_T = 5632
_off = 0


def _alloc(n):
    global _off
    o = _off
    _off = (_off + n + 4095) // 4096 * 4096
    return o


WQ = _alloc(16 * WQ_SL + 4096)
W1 = _alloc(16 * W1_SL + 4096)
WO = _alloc(32 * WO_SL)
W2 = _alloc(32 * W2_SL)
CS = _alloc(2 * 16 * 20480)
GL = _alloc(256 * 128)
KL = _alloc(256 * 128)
LF = _alloc(16 * 16 * 128)
ST = _alloc(32 * 4096)
XB = _alloc(64 * 40960)
OB = _alloc(128 * 20480)
HB = _alloc(128 * 57344)
KV = _alloc(2 * 256 * 4 * KV_T)
KV_L = 256 * 4 * KV_T
STAMP = _alloc(1024 * 256)
WS_BYTES = 268435456
OOB = 0x40000000
POLL_LIMIT = 20000

WS, OUT, SX, SWQ, SW1, SW2, DBG = "s[4:7]", "s[8:11]", "s[12:15]", "s[16:19]", "s[20:23]", "s[24:27]", "s[28:31]"
HALF = "s[48:49]"
_sn = 50
SR = {}


def sreg(name):
    global _sn
    if name not in SR:
        SR[name] = f"s{_sn}"
        _sn += 1
        assert _sn <= 102
    return SR[name]


class _S:
    def __getattr__(self, n):
        return sreg(n)


s = _S()
SR["w"] = "s3"
for _i in range(10):
    SR[f"t{_i}"] = f"s{32 + _i}"
for _i, _n in enumerate(("oA", "oB", "oD", "cnt")):
    SR[_n] = f"s{42 + _i}"

for _late, _early in (("slow", "okq"), ("wq4", "e0"), ("w14", "e1"), ("w2d", "X"), ("xcc", "j")):
    SR[_late] = sreg(_early)

vLane, vL16, vL16b, vL16c, vStamp = "v0", "v1", "v2", "v3", "v4"
AD = [f"v{i}" for i in range(5, 16)]
RES = 16
TMP = 26
ACC = 52
XV = 116
YA, XA, WB, CSA = 0, 204, 224, 248


def vr(b, n=1, k="v"):
    return f"{k}{b}" if n == 1 else f"{k}[{b}:{b + n - 1}]"


def ar(b, n=1):
    return vr(b, n, "a")


def xfrag(k):
    return ar(XA + 4 * k, 4) if k < 5 else vr(XV + 4 * (k - 5), 4)


def b5frag(n):
    return ar(YA + 4 * n, 4) if n < 51 else xfrag(n - 51)


def b3frag(n):
    return vr(XV + 40 + 4 * n, 4)


def f32(x):
    return "0x%08x" % struct.unpack("<I", struct.pack("<f", x))[0]


P = Prog()
LAYER = 0
_lab = 0


def label(p="L"):
    global _lab
    _lab += 1
    return f"{p}_{_lab}"


def lin(dst, const, *terms):
    o, first = [], True
    for r, c in terms:
        tgt = dst if first else s.lt
        if c == 1:
            if first and const:
                o.append(f"s_add_u32 {dst}, {r}, {const & 0xffffffff}")
                const = 0
            elif first:
                o.append(f"s_mov_b32 {dst}, {r}")
            else:
                o.append(f"s_add_u32 {dst}, {dst}, {r}")
        else:
            o.append(f"s_mul_i32 {tgt}, {r}, {c}")
            if not first:
                o.append(f"s_add_u32 {dst}, {dst}, {tgt}")
        first = False
    if const:
        o.append(f"s_add_u32 {dst}, {dst}, {const & 0xffffffff}")
    return o


def cls_of(x):
    if isinstance(x, list):
        return 1
    if x.kind in ("salu", "wait", "wantvm", "wantlg", "nop"):
        return 0
    if x.kind == "valu":
        return 2
    return 1


def cost_of(x):
    if isinstance(x, list):
        return sum(cost_of(y) for y in x)
    if x.kind in ("vld", "vst", "dma"):
        return 12
    if x.kind in ("label", "touch", "wantvm", "wantlg"):
        return 0
    if x.kind == "ldsw":
        return 8
    if x.kind == "valu" and x.op.startswith(("v_exp", "v_rcp", "v_rsq")):
        return 8
    return 4


class Beats:
    def __init__(self, mfmas):
        self.m = [I(x) if isinstance(x, str) else x for x in mfmas]
        self.f = [[] for _ in self.m]
        self.cap = [32 if x.npass == 8 else 16 for x in self.m]
        self.used = [8 for _ in self.m]
        self.tail = []

    def at(self, b, x):
        for y in ([I(z.strip()) for z in x.split("\n")] if isinstance(x, str) else [x]):
            self.f[b].append(y)
            self.used[b] += cost_of(y)
        return y

    def every(self, items, b0, step):
        for i, grp in enumerate(items):
            self.at(min(int(b0 + i * step), len(self.m) - 1), list(grp))
        return min(int(b0 + len(items) * step), len(self.m) - 1)

    def spread(self, stream, b0, limit=None):
        b, last = b0, -1
        end = len(self.m) if limit is None else limit
        for x in stream:
            if x == "|":
                b, last = min(b + 1, end), -1
                continue
            x = I(x) if isinstance(x, str) else x
            c, k = cost_of(x), cls_of(x)
            if k < last:
                b += 1
            while b < end and self.used[b] + c > self.cap[b] and not (c > 12 and self.used[b] <= 16):
                b += 1
            if b >= end:
                if limit is None:
                    self.tail.append(x)
                else:
                    assert k == 2, "only VALU may overflow into the limit beat"
                    self.at(limit, x)
                continue
            self.at(b, x)
            last = k
        return b

    def emit(self, phase=-1):
        n = len(self.m)
        pts = [0, n // 4, n // 2, 3 * n // 4, 7 * n // 8, n - 1] if OPT["probe"] == phase + 10 * LAYER else []
        for b, (m, f) in enumerate(zip(self.m, self.f)):
            P(m)
            if b in pts:
                i = pts.index(b)
                P(f"s_memtime s[{PROBE + 2 * i}:{PROBE + 1 + 2 * i}]")
            for x in sorted(f, key=cls_of):
                P(x)
        for x in self.tail:
            P(x)
        if pts:
            P("s_memtime s[46:47]\ns_waitcnt lgkmcnt(0)")
            for i in range(6):
                P(f"v_writelane_b32 {vStamp}, s{PROBE + 2 * i}, {44 + i}")
            P(f"v_writelane_b32 {vStamp}, s46, 50")
            print("probe beats", pts, "tail", len(self.tail))


PROBE = 20


def mf32(d, a, b, c):
    return f"v_mfma_f32_32x32x16_bf16 {d}, {a}, {b}, {c}"


def mf8(d, a, b, c):
    return f"v_mfma_f32_32x32x8_bf16 {d}, {a}, {b}, {c}"


def mf16(d, a, b, c):
    return f"v_mfma_f32_16x16x32_bf16 {d}, {a}, {b}, {c}"


class RegStream:
    def __init__(self, dsts, base, so, first=0, weight=True):
        self.d, self.base, self.so, self.i, self.weight, self.last = dsts, base, so, first, weight, None

    def take(self, n=None):
        out, fresh = [], True
        n = len(self.d) - self.i if n is None else n
        for _ in range(n):
            i, g = self.i, []
            if fresh or i % 4 == 0:
                g.append(I(f"s_add_u32 {self.so}, {self.base}, {1024 * (i - i % 4)}"))
            g.append(I(f"buffer_load_dwordx4 {self.d[i]}, {vL16}, {WS}, {self.so} offen offset:{1024 * (i % 4)} sc1"))
            out.append([I("s_nop 0")] if OPT["nob"] and self.weight else g)
            self.last = out[-1][-1]
            self.i, fresh = i + 1, False
        return out


class DmaStream:
    def __init__(self, base, off0, lds0, groups, tailn=0):
        self.base, self.off0, self.lds0, self.groups, self.tailn = base, off0, lds0, groups, tailn
        self.i, self.n, self.last = 0, 4 * groups + tailn, None

    def take(self, n=None):
        out, fresh = [], True
        n = self.n - self.i if n is None else n
        for _ in range(n):
            i, g = self.i, []
            if fresh or i % 4 == 0:
                d = 16384 * (i // 4)
                g += [I(f"s_add_u32 m0, {s.w4k}, {self.lds0 + d}"), I(f"s_add_u32 {s.oD}, {self.base}, {self.off0 + d}")]
                if i // 4 == self.groups:
                    g += [I(f"s_mul_i32 {s.lt}, {s.w}, {1024 * (4 - self.tailn)}"), I(f"s_sub_u32 m0, m0, {s.lt}"),
                          I(f"s_sub_u32 {s.oD}, {s.oD}, {s.lt}")]
            g.append(I(f"buffer_load_dwordx4 {vL16}, {WS}, {s.oD} offen offset:{1024 * (i % 4)} sc1 lds"))
            out.append([I("s_nop 0")] if OPT["nob"] else g)
            self.last = out[-1][-1]
            self.i, fresh = i + 1, False
        return out


def flat(groups):
    return [x for g in groups for x in g]


def dual(stores):
    ins = [I(t) for t in stores]
    touch = Ins("", "touch")
    for x in ins:
        touch.src |= x.src
    a, b = label("L_wt"), label("L_bk")
    P.tail += [I(a + ":")] + [I(t + " sc1") for t in stores] + [I(f"s_branch {b}")]
    return [touch, I(f"s_cmp_lg_u32 {s.slow}, 0"), I(f"s_cbranch_scc1 {a}")] + ins + [I(b + ":")]


def poll(voff, soff, epoch, vt, srd=WS):
    a, b = label("L_poll"), label("L_got")
    P(f"""s_mov_b32 {s.cnt}, {POLL_LIMIT}
    {a}:
    buffer_load_dword {vt}, {voff}, {srd}, {soff} offen sc1
    s_sub_u32 {s.cnt}, {s.cnt}, 1
    s_cbranch_scc1 {b}
    s_waitcnt vmcnt(0)
    v_cmp_gt_u32 vcc, {epoch}, {vt}
    s_cbranch_vccnz {a}
    {b}:
    s_waitcnt vmcnt(0)""")


FLAGV = TMP + 24


def flag_store(soff, always_wt, off=0):
    st = f"buffer_store_dword {vr(FLAGV)}, {vLane}, {WS}, {soff} offen offset:{off}"
    return [I("s_mov_b64 exec, 1")] + ([I(st + " sc1")] if always_wt else dual([st])) + [I("s_mov_b64 exec, -1")]


def set_flag(soff, epoch):
    P(f"v_mov_b32 {vr(FLAGV)}, {epoch}\ns_waitcnt vmcnt(0)")
    P(flag_store(soff, False))


RT_IDS = [3, 5, 8, 11, 12, 14]


def stamp(i):
    if not OPT["stamps"]:
        return
    P(f"s_memtime s[46:47]\ns_waitcnt lgkmcnt(0)\nv_writelane_b32 {vStamp}, s46, {24 * LAYER + i}")
    if i in RT_IDS and not OPT["probe"]:
        rstamp(44 + 6 * LAYER + RT_IDS.index(i))


def rstamp(i):
    if OPT["stamps"]:
        P(f"s_memrealtime s[46:47]\ns_waitcnt lgkmcnt(0)\nv_writelane_b32 {vStamp}, s46, {i}")


def stop_after(n):
    if OPT["stop"] == n and LAYER == 0:
        P("s_waitcnt vmcnt(0) lgkmcnt(0)\ns_branch L_fin")


def lane_parts32(tok, hf):
    return [f"v_and_b32 {tok}, 31, {vLane}", f"v_lshrrev_b32 {hf}, 5, {vLane}"]


def x_addr():
    t, q = vr(TMP), vr(TMP + 1)
    return [f"v_and_b32 {t}, 15, {vLane}", f"v_lshrrev_b32 {q}, 4, {vLane}",
            f"v_lshlrev_b32 {AD[0]}, 4, {t}", f"v_lshl_add_u32 {AD[0]}, {q}, 9, {AD[0]}",
            f"v_lshrrev_b32 {AD[2]}, 1, {q}", f"v_lshlrev_b32 {AD[1]}, 9, {AD[2]}",
            f"v_lshl_add_u32 {AD[1]}, {t}, 4, {AD[1]}", f"v_and_b32 {q}, 1, {q}",
            f"v_lshl_add_u32 {AD[1]}, {q}, 3, {AD[1]}", f"v_add_u32 {AD[1]}, 0x1000, {AD[1]}",
            f"v_lshlrev_b32 {AD[2]}, 2, {AD[2]}", f"v_lshl_add_u32 {AD[2]}, {t}, 3, {AD[2]}"]


def row_addr(a, b):
    t, q = vr(TMP), vr(TMP + 1)
    return [f"v_and_b32 {t}, 15, {vLane}", f"v_lshrrev_b32 {q}, 4, {vLane}", f"v_mul_u32_u24 {t}, 1280, {t}",
            f"v_lshl_add_u32 {a}, {q}, 4, {t}", f"v_lshl_add_u32 {b}, {q}, 3, {t}"]


def x_stores():
    return [f"buffer_store_dwordx4 {vr(RES, 4)}, {AD[0]}, {WS}, {s.xst} offen",
            f"buffer_store_dwordx4 {vr(RES + 4, 4)}, {AD[0]}, {WS}, {s.xst} offen offset:2048",
            f"buffer_store_dwordx2 {vr(RES + 8, 2)}, {AD[1]}, {WS}, {s.xst} offen"]


def publish_x():
    P(dual(x_stores()))
    a, b = vr(TMP), vr(TMP + 1)
    for i in range(10):
        P(f"v_dot2_f32_bf16 {a}, {vr(RES + i)}, {s.ones}, {a if i else 0}")
        P(f"v_dot2_f32_bf16 {b}, {vr(RES + i)}, {vr(RES + i)}, {b if i else 0}")
    P(f"""v_permlane32_swap_b32 {a}, {b}
    v_add_f32 {a}, {a}, {b}
    v_mov_b32 {b}, {a}
    v_permlane16_swap_b32 {a}, {b}
    v_add_f32 {a}, {a}, {b}""")
    P(dual([f"buffer_store_dword {a}, {AD[2]}, {WS}, {s.stw} offen"]))


def touch_loads(stores):
    return [[I(f"buffer_load_dword {vr(TMP + 25)},{t.split(',', 1)[1]} sc1")] for t in stores]


def x_touch():
    return touch_loads(x_stores() + [f"buffer_store_dword v0, {AD[2]}, {WS}, {s.stw} offen"])


def srd(n, lo, size):
    b = int(n[2:].split(":")[0])
    return f"s_mov_b32 s{b}, s{lo}\ns_mov_b32 s{b + 1}, s{lo + 1}\ns_mov_b32 s{b + 2}, {size}\ns_mov_b32 s{b + 3}, 0x20000"


def colsum_partial(fr, out):
    p = [vr(out + t) for t in (0, 2, 1, 3)]
    for i in range(4):
        for t in range(4):
            P(f"v_dot2_f32_bf16 {p[t]}, {vr(fr + 4 * t + i)}, {s.ones}, {p[t] if i else 0}")
    P(f"""v_permlane32_swap_b32 {p[0]}, {p[1]}
    v_permlane32_swap_b32 {p[2]}, {p[3]}
    v_add_f32 {p[0]}, {p[0]}, {p[1]}
    v_add_f32 {p[2]}, {p[2]}, {p[3]}""")


PARK = YA + 24
SC_W, SC_A, SC_R = 33792, 4096, 24576


def p0():
    P(f"""s_cmp_ge_u32 s2, 256
    s_cbranch_scc1 L_end
    s_load_dwordx16 s[32:47], s[0:1], 0
    s_load_dwordx2 s[48:49], s[0:1], 64
    {"s_memtime s[22:23]" if OPT["stamps"] else ""}
    {"s_memrealtime s[24:25]" if OPT["stamps"] else ""}
    s_getpc_b64 s[20:21]
    L_pc:
    v_lshrrev_b32 v1, 6, v0
    v_and_b32 {vLane}, 63, v0
    v_readfirstlane_b32 {s.w}, v1
    v_lshlrev_b32 {vL16}, 4, {vLane}
    v_mov_b32 {vStamp}, 0
    s_and_b32 {s.X}, s2, 7
    s_lshr_b32 {s.j}, s2, 3
    s_and_b32 {s.cs16}, {s.j}, 15
    s_and_b32 {s.cs8}, {s.j}, 7
    s_lshr_b32 s14, {s.j}, 4
    s_lshr_b32 s15, {s.j}, 3""")
    P(lin(s.g, 0, (s.X, 2), ("s14", 1)) + lin(s.b64, 0, (s.X, 4), ("s15", 1)))
    r4, c4, u = vr(TMP + 2), vr(TMP + 3), vr(TMP + 4)
    a, b, c = vr(TMP + 5), vr(TMP + 6), vr(TMP + 7)
    Q = [vr(ACC + i) for i in range(4)]
    Z = ACC + 4
    P(lin(s.uq, 0, (s.w, 16), (s.g, 1)))
    P(f"""v_lshrrev_b32 {r4}, 2, {vLane}
    v_and_b32 {c4}, 3, {vLane}
    s_cmp_lt_u32 {s.uq}, 40
    s_cselect_b32 {s.okq}, 0, {OOB}
    s_min_u32 {s.uq}, {s.uq}, 39
    v_mul_u32_u24 {u}, 3840, {r4}
    v_lshl_add_u32 {u}, {c4}, 4, {u}
    v_add_u32 {u}, {s.okq}, {u}
    v_cmp_eq_u32 vcc, 0, {c4}
    v_add_u32 {Q[0]}, 1280, {u}
    v_add_u32 {Q[1]}, 2544, {u}
    v_add_u32 {a}, 1344, {u}
    v_cndmask_b32 {Q[1]}, {Q[1]}, {a}, vcc
    v_cmp_le_u32 vcc, 2, {c4}
    v_add_u32 {Q[2]}, 2608, {u}
    v_subrev_u32 {a}, 32, {u}
    v_cndmask_b32 {Q[2]}, {Q[2]}, {a}, vcc
    v_cmp_eq_u32 vcc, 3, {c4}
    v_add_u32 {Q[3]}, 32, {u}
    v_add_u32 {a}, 16, {u}
    v_cndmask_b32 {Q[3]}, {Q[3]}, {a}, vcc
    s_mul_i32 {s.ldsw}, {s.w}, {SC_W}""")
    P(lin(s.e0, 0, (s.uq, 16 * 3840), (s.cs16, 80)))
    P(row_addr(AD[3], AD[4]))
    P(lin(s.row, 0, (s.b64, 64 * 1280), (s.w, 16 * 1280), (s.cs8, 160)))
    for i in range(4):
        P(f"v_mov_b32 {vr(Z + i)}, 0")
    P(lin(s.e1, 0, (s.j, 2048), (s.w, 512)))
    P(f"""v_lshl_add_u32 {a}, {vLane}, 7, {s.e1}
    v_min_u32 {a}, L_code_end-L_pc-4, {a}
    s_waitcnt lgkmcnt(0)""")
    P(srd(WS, 48, WS_BYTES))
    P("s_cmp_lg_u32 s2, 0\ns_cbranch_scc1 L_nozero")
    P(lin(s.e1, GL, (s.w, 8192)))
    for i in range(8):
        if i == 4:
            P(f"s_add_u32 {s.e1}, {s.e1}, 4096")
        P(f"buffer_store_dwordx4 {vr(Z, 4)}, {vL16}, {WS}, {s.e1} offen offset:{1024 * (i % 4)} sc1")
    P("L_nozero:")
    P(srd(SWQ, 34, 640 * 3840))
    for t in range(4):
        wqd = P(f"s_add_u32 m0, {s.ldsw}, {1024 * t}\nbuffer_load_dwordx4 {Q[t]}, {SWQ}, {s.e0} offen lds")
    P(srd(SX, 32, 2048 * 1280))
    P(f"""buffer_load_dwordx4 {vr(RES, 4)}, {AD[3]}, {SX}, {s.row} offen
    buffer_load_dwordx4 {vr(RES + 4, 4)}, {AD[3]}, {SX}, {s.row} offen offset:64
    buffer_load_dwordx2 {vr(RES + 8, 2)}, {AD[4]}, {SX}, {s.row} offen offset:128
    s_mov_b64 exec, 15
    global_load_dword {vr(TMP + 25)}, {a}, s[20:21]
    s_mov_b64 exec, -1""")
    P(srd(DBG, 46, 256))
    if OPT["stamps"]:
        P(f"v_writelane_b32 {vStamp}, s22, 0\nv_writelane_b32 {vStamp}, s24, 60")
    stamp(17)
    P(f"""s_cmp_eq_u32 s2, 0
    s_cselect_b32 {s.t0}, 0, {OOB}
    v_mov_b32 {a}, {s.t0}
    v_mov_b32 {b}, 1
    s_lshl_b32 {s.t1}, {s.w}, 2
    s_waitcnt vmcnt(8)
    s_mov_b64 exec, 1
    buffer_store_dword {b}, {a}, {DBG}, {s.t1} offen sc1
    s_mov_b64 exec, -1""")
    tra, t3q, l16q, l8q, l4 = (vr(ACC + 8 + i) for i in range(5))
    P(f"""s_mov_b32 {s.ones}, 0x3f803f80
    v_lshrrev_b32 {a}, 5, {vLane}
    v_bfe_u32 {b}, {vLane}, 2, 2
    v_lshl_add_u32 {tra}, {a}, 3, {b}
    v_lshlrev_b32 {tra}, 6, {tra}
    v_bfe_u32 {c}, {vLane}, 4, 1
    v_lshl_add_u32 {tra}, {c}, 5, {tra}
    v_lshl_add_u32 {tra}, {c4}, 3, {tra}
    v_add_u32 {tra}, {s.ldsw}, {tra}
    v_and_b32 {c}, 31, {vLane}
    v_mul_u32_u24 {t3q}, 24, {a}
    v_add_lshl_u32 {t3q}, {t3q}, {c}, 4
    v_add_u32 {t3q}, {s.okq}, {t3q}
    v_add_u32 {l16q}, {s.okq}, {vL16}
    v_lshl_add_u32 {l8q}, {vLane}, 3, {s.okq}
    v_lshlrev_b32 {l4}, 2, {vLane}
    v_add_u32 {vL16b}, 0x10000, {vL16}
    v_add_u32 {vL16c}, 0x20000, {vL16}""")
    sa = [vr(ACC + 13), vr(ACC + 14)]
    ra = [vr(ACC + 15 + i) for i in range(4)]
    P(f"""v_lshrrev_b32 {u}, 3, {vLane}
    v_mul_u32_u24 {u}, 1280, {u}
    v_lshrrev_b32 {b}, 4, {vLane}
    v_xor_b32 {b}, {b}, {vLane}
    v_and_b32 {b}, 7, {b}
    v_lshl_add_u32 {sa[0]}, {b}, 4, {u}
    v_xor_b32 {b}, 4, {b}
    v_lshl_add_u32 {sa[1]}, {b}, 4, {u}
    v_bfe_u32 {b}, {vLane}, 1, 3
    v_xor_b32 {b}, {a}, {b}
    v_lshlrev_b32 {u}, 7, {c}
    v_add_u32 {u}, {s.ldsw}, {u}""")
    for i in range(4):
        P(f"v_xor_b32 {ra[i]}, {2 * i}, {b}\nv_lshl_add_u32 {ra[i]}, {ra[i]}, 4, {u}")
    P(srd(OUT, 44, 2048 * 1280))
    P(srd(SW1, 40, 640 * 3456))
    P(f"""s_add_u32 {s.t0}, {s.w}, 1
    s_and_b32 {s.t0}, {s.t0}, 3
    s_lshr_b32 {s.t1}, {s.t0}, 1
    s_xor_b32 {s.t0}, {s.t0}, {s.t1}""")
    P(lin(s.u2, 0, (s.t0, 32), (s.b64, 1)) + lin(s.uf, 48, (s.g, 1), (s.w, -16)))
    P(f"""s_cmp_lt_u32 {s.uf}, 40
    s_cselect_b32 {s.okf}, 0, {OOB}
    s_min_u32 {s.uf}, {s.uf}, 39
    s_cmp_lt_u32 {s.u2}, 76
    s_cselect_b32 {s.ok2}, 0, {OOB}
    s_min_u32 {s.u2}, {s.u2}, 75
    s_cmp_lt_u32 {s.u2}, 56
    s_cselect_b32 s24, s42, s36
    s_cselect_b32 s25, s43, s37
    s_mov_b32 s26, {640 * 1280}
    s_cselect_b32 s26, {1728 * 1280}, s26
    s_mov_b32 s27, 0x20000
    s_mov_b32 s48, 0
    s_mov_b32 s49, -1
    s_mov_b32 {s.ninf}, 0xff800000""")
    blk, wh, wl, cq, cr, kl, lf, bl = s.t2, s.t3, s.t4, s.t5, s.t6, s.t7, s.t8, s.t9
    P(lin(blk, 0, (s.g, 4), (s.w, 1)))
    P(f"""s_lshr_b32 {wh}, {s.w}, 1
    s_and_b32 {wl}, {s.w}, 1
    s_lshr_b32 {cq}, {s.cs16}, 2
    s_and_b32 {cr}, {s.cs16}, 3
    s_and_b32 {bl}, {s.b64}, 1
    s_lshl_b32 {s.w4k}, {s.w}, 12""")
    P(lin(s.wq, WQ, (s.cs16, WQ_SL)) + lin(s.csb, CS, (s.cs16, 20480)))
    P(lin(kl, KL, (s.cs16, 2048), (s.g, 128)) + lin(lf, LF, (s.g, 2048)) + lin(s.t0, 0, (s.cs16, 128), (lf, 1)))
    P(f"s_cmp_eq_u32 {s.w}, 0\ns_cselect_b32 {s.zl}, {kl}, {s.t0}")
    P(lin(s.gl, GL, ("s2", 128)) + lin(s.xraw, 0, (blk, 32 * 1280)))
    P(lin(s.xld, XB, (blk, 40960)) + lin(s.stl, ST, (s.g, 8192), (wh, 4096), (wl, 256)))
    P(lin(s.xst, XB, (s.b64, 81920), (wh, 40960), (s.cs8, 5120), (wl, 256)))
    P(lin(s.stw, ST, (s.b64, 4096), (s.cs8, 512), (s.w, 128)))
    P(lin(s.t0, OB, (blk, 40960), (cq, 5120)) + lin(s.o1, 0, (cr, 1024), (s.t0, 1)) + lin(s.o2, 4096, (cr, 256), (s.t0, 1)))
    P(lin(s.t0, HB, (blk, 114688), (cq, 14336)) + lin(s.h1, 0, (cr, 3072), (s.t0, 1)) + lin(s.h2, 12288, (cr, 512), (s.t0, 1)))
    P(lin(s.oal, OB, (s.b64, 81920), (s.w, 5120)) + lin(s.hal, HB, (s.b64, 229376), (s.w, 14336)))
    P(lin(s.w1, W1, (s.cs16, W1_SL)) + lin(s.wo, WO, (s.cs8, 4 * WO_SL), (s.w, WO_SL)) + lin(s.w2, W2, (s.cs8, 4 * W2_SL), (s.w, W2_SL)))
    P(lin(s.kvw, 0, (s.w, KV_T)) + lin(s.t0, KV, (s.cs16, 64 * KV_T), (s.g, 4 * KV_T)) + lin(s.kst, 0, (s.t0, 1), (s.kvw, 1)))
    P(f"s_mul_i32 {s.hw}, {s.w}, 3072\ns_min_u32 {s.hw}, {s.hw}, 8192")
    P(lin(s.kld, -8 * KV_T, (s.t0, 1), (s.hw, 1)) + lin(s.fkw, 0, (s.w, 4), (kl, 1)) + lin(s.fkr, -256, (kl, 1)))
    P(lin(s.fxw, 0, (bl, 256), (wh, 128), (s.cs8, 8), (wl, 4), (lf, 1)) + lin(s.fxr, 0, (s.w, 128), (lf, 1)))
    P(lin(s.fo_r, 512, (bl, 512), (s.fxr, 1)) + lin(s.fow, 512, (wh, 512), (cq, 128), (cr, 8), (wl, 4), (lf, 1)))
    P(lin(s.t0, 0, (s.uq, 3072), (s.wq, 1)) + lin(s.t1, 122880, (s.uq, 768), (s.wq, 1)) + lin(s.t2, 0, (s.uq, 512), (s.csb, 1)))
    FR = ACC + 32
    stamp(16)
    P(wait_vm(wqd))
    stamp(1)
    for t in range(4):
        for h in range(2):
            P(f"ds_read_b64_tr_b16 {vr(FR + 4 * t + 2 * h, 2)}, {tra} offset:{1024 * t + 256 * h}")
    for t in range(3):
        P(f"buffer_store_dwordx4 {vr(FR + 4 * t, 4)}, {l16q}, {WS}, {s.t0} offen offset:{1024 * t} sc1")
    P(f"""s_mov_b32 exec_lo, 0xffffff
    s_mov_b32 exec_hi, 0xffffff
    buffer_store_dwordx4 {vr(FR + 12, 4)}, {t3q}, {WS}, {s.t1} offen sc1
    s_mov_b64 exec, 0xff
    s_cmp_ge_u32 {s.w}, 2
    s_cbranch_scc1 L_nozl
    buffer_store_dwordx4 {vr(Z, 4)}, {vL16}, {WS}, {s.zl} offen sc1
    L_nozl:
    s_mov_b64 exec, -1""")
    colsum_partial(FR, TMP + 8)
    P(f"""buffer_store_dwordx2 {vr(TMP + 8, 2)}, {l8q}, {WS}, {s.t2} offen sc1
    v_and_b32 {l4}, 12, {l4}
    buffer_load_dword {vr(TMP + 16)}, {l4}, {DBG}, 0 offen sc1""")

    def stage(bk):
        last = None
        for i in range(4):
            last = P(f"""s_add_u32 m0, {s.ldsw}, {SC_A + 4096 * (bk % 5) + 1024 * i}
            s_add_u32 {s.oA}, {s.xraw}, {8 * 1280 * i + 128 * bk}
            buffer_load_dwordx4 {sa[i & 1]}, {SX}, {s.oA} offen lds""")
        return last

    land = [stage(bk) for bk in range(OPT.get("st0", 2))]
    stamp(18)
    P(f"""s_getreg_b32 {s.xcc}, hwreg(HW_REG_XCC_ID)
    s_and_b32 {s.xcc}, {s.xcc}, 15
    s_add_u32 {s.xcc}, {s.xcc}, 1
    v_mov_b32 {vr(FLAGV)}, {s.xcc}""")
    P(lin(s.t0, 0, (s.w, 4), (s.gl, 1)))
    P(f"""v_cmp_gt_u32 vcc, 1, {vr(TMP + 16)}
    s_cbranch_vccnz L_boot
    L_booted:""")
    T = Prog()
    T(f"""L_boot:
    s_mov_b32 {s.cnt}, {POLL_LIMIT}
    L_boot2:
    buffer_load_dword {vr(TMP + 16)}, {l4}, {DBG}, 0 offen sc1
    s_sub_u32 {s.cnt}, {s.cnt}, 1
    s_cbranch_scc1 L_boot3
    s_waitcnt vmcnt(0)
    v_cmp_gt_u32 vcc, 1, {vr(TMP + 16)}
    s_nop 0
    s_cbranch_vccnz L_boot2
    L_boot3:
    s_waitcnt vmcnt(0)
    s_branch L_booted""")
    P.tail += T.ins
    P(flag_store(s.t0, True))
    stamp(20)
    land += [stage(bk) for bk in range(len(land), 5)]
    F = [vr(ACC + 19), vr(ACC + 20)]
    tb1, tb2, w2v = vr(ACC + 21), vr(ACC + 22), vr(ACC + 23)
    P(f"""v_mul_u32_u24 {u}, 3456, {r4}
    v_add_u32 {u}, {s.okf}, {u}""")
    P(lin(s.t0, 0, (s.uf, 16 * 3456), (s.cs16, 216)))
    P(f"""v_add_u32 {u}, {s.t0}, {u}
    v_lshl_add_u32 {F[0]}, {c4}, 4, {u}
    v_min_u32 {a}, 1, {c4}
    v_lshl_add_u32 {F[1]}, {a}, 4, {u}
    v_add_u32 {F[1]}, 192, {F[1]}
    v_bfe_u32 {b}, {vLane}, 2, 2
    v_lshrrev_b32 {a}, 4, {vLane}
    v_lshl_add_u32 {a}, {a}, 3, {b}
    v_lshlrev_b32 {a}, 5, {a}
    v_add_u32 {a}, {s.ldsw}, {a}
    v_lshl_add_u32 {tb2}, {c4}, 3, {a}
    v_lshrrev_b32 {b}, 1, {c4}
    v_lshl_add_u32 {tb1}, {b}, 10, {a}
    v_and_b32 {b}, 1, {c4}
    v_lshl_add_u32 {tb1}, {b}, 4, {tb1}""")
    uq_, kk, base, cA, cB, cC, inv, dst = s.t0, s.t1, s.t2, s.t3, s.t4, s.t5, s.t6, s.w2d
    P(f"""s_cmp_lt_u32 {s.u2}, 56
    s_cbranch_scc0 L_unit_wo
    s_mul_i32 {uq_}, {s.u2}, 4682
    s_lshr_b32 {uq_}, {uq_}, 16""")
    P(lin(kk, 0, (uq_, -14), (s.u2, 1)) + lin(dst, W2, (s.cs8, 56 * 5120), (s.u2, 5120)))
    P(f"""s_mov_b32 {cB}, 4
    s_mov_b32 {cC}, 8
    s_cmp_lt_u32 {kk}, 12
    s_cbranch_scc0 L_unit_w2l
    s_mul_i32 {s.t7}, {kk}, 21846
    s_lshr_b32 {s.t7}, {s.t7}, 16""")
    P(lin(base, 0, (uq_, 432), (s.t7, 12), (kk, 32)))
    P(f"""s_mov_b32 {cA}, 16
    s_mov_b32 {inv}, 0
    s_branch L_unit_done
    L_unit_w2l:""")
    P(lin(base, 96 - 12 * 216, (uq_, 432), (kk, 216)))
    P(f"""s_mov_b32 {cA}, 108
    s_mov_b32 {inv}, {OOB}
    s_branch L_unit_done
    L_unit_wo:
    s_sub_u32 {s.t7}, {s.u2}, 56
    s_mul_i32 {uq_}, {s.t7}, 13108
    s_lshr_b32 {uq_}, {uq_}, 16""")
    P(lin(kk, 0, (uq_, -5), (s.t7, 1)) + lin(dst, WO, (s.cs8, 20 * 5120), (s.t7, 5120)))
    P(f"""s_mul_i32 {base}, {uq_}, 160
    s_mul_i32 {s.t8}, {kk}, 40
    s_mov_b32 {inv}, 0
    s_cmp_lt_u32 {kk}, 4
    s_cselect_b32 {s.t8}, {s.t8}, 16
    s_cselect_b32 {cA}, 24, 80
    s_cselect_b32 {cB}, 4, 40
    s_cselect_b32 {cC}, 8, 4
    s_add_u32 {base}, {base}, {s.t8}
    L_unit_done:
    v_bfe_u32 {a}, {vLane}, 1, 2
    v_add_u32 {w2v}, {base}, {a}
    v_lshrrev_b32 {a}, 5, {vLane}
    v_mad_u32_u24 {w2v}, {a}, {cA}, {w2v}
    v_bfe_u32 {a}, {vLane}, 4, 1
    v_mad_u32_u24 {w2v}, {a}, {cB}, {w2v}
    v_bfe_u32 {b}, {vLane}, 3, 1
    v_mad_u32_u24 {w2v}, {b}, {cC}, {w2v}
    v_mul_u32_u24 {w2v}, 1280, {w2v}
    v_and_b32 {a}, {a}, {b}
    v_mul_lo_u32 {a}, {a}, {inv}
    v_or_b32 {a}, {s.ok2}, {a}
    v_add_u32 {w2v}, {w2v}, {a}
    v_and_b32 {a}, 1, {vLane}
    v_lshl_add_u32 {w2v}, {a}, 4, {w2v}
    s_mul_i32 {s.t0}, {s.cs8}, 160""")

    def rest_loads():
        for t in range(4):
            P(f"""s_add_u32 m0, {s.ldsw}, {SC_R + 1024 * t}
            s_mov_b32 {s.t1}, {64 * t if t < 3 else 0}
            buffer_load_dwordx4 {F[t // 3]}, {SW1}, {s.t1} offen lds""")
        for i in range(5):
            last = P(f"""s_add_u32 m0, {s.ldsw}, {SC_R + 4096 + 1024 * i}
            s_add_u32 {s.t1}, {s.t0}, {32 * i}
            buffer_load_dwordx4 {w2v}, {SW2}, {s.t1} offen lds""")
        return last

    DUP = ACC + 32
    sq = [vr(TMP + 8 + i) for i in range(4)]
    for bk in range(10):
        P(wait_vm(land[bk]))
        for i in range(4):
            k = 4 * bk + i
            off = SC_A + 4096 * (bk % 5)
            rd = P(f"ds_read_b128 {xfrag(k)}, {ra[i]} offset:{off}")
            if k < 5:
                rd = P(f"ds_read_b128 {vr(DUP + 4 * k, 4)}, {ra[i]} offset:{off}")
        P(wait_lg(rd))
        if bk < 5:
            land.append(stage(bk + 5))
        if bk == 4:
            rest = rest_loads()
        for i in range(4):
            k = 4 * bk + i
            r0 = DUP + 4 * k if k < 5 else XV + 4 * (k - 5)
            for e in range(4):
                z = k == 0 and e < 2
                x, y = sq[2 * (e & 1)], sq[2 * (e & 1) + 1]
                P(f"v_dot2_f32_bf16 {x}, {vr(r0 + e)}, {s.ones}, {0 if z else x}")
                P(f"v_dot2_f32_bf16 {y}, {vr(r0 + e)}, {vr(r0 + e)}, {0 if z else y}")
    P(f"v_add_f32 {vr(TMP)}, {sq[0]}, {sq[2]}\nv_add_f32 {vr(TMP + 1)}, {sq[1]}, {sq[3]}")
    P(stats_calc(False)[6:])
    stamp(21)
    P(wait_vm(rest))
    stamp(2)
    for t in range(4):
        for h in range(2):
            P(f"ds_read_b64_tr_b16 {vr(FR + 4 * t + 2 * h, 2)}, {tra} offset:{SC_R + 1024 * t + 256 * h}")
            P(f"ds_read_b64_tr_b16 {ar(PARK + 4 * t + 2 * h, 2)}, {tra} offset:{SC_R + 1024 * t + 256 * h}")
    for t in range(5):
        for h in range(2):
            ad, off = (tb1, 2048 * (t >> 1) + 8 * (t & 1)) if t < 4 else (tb2, 4096)
            P(f"ds_read_b64_tr_b16 {ar(PARK + 16 + 4 * t + 2 * h, 2)}, {ad} offset:{SC_R + 4096 + off + 128 * h}")
    colsum_partial(FR, TMP + 8)
    P(f"""v_accvgpr_write_b32 {ar(PARK + 36)}, {vr(TMP + 8)}
    v_accvgpr_write_b32 {ar(PARK + 37)}, {vr(TMP + 9)}
    s_mov_b32 s12, s4
    s_mov_b32 s13, s5
    s_cmp_eq_u32 {s.okf}, 0
    s_cselect_b32 s14, {WS_BYTES}, 0
    s_mov_b32 s16, s4
    s_mov_b32 s17, s5
    s_cmp_eq_u32 {s.ok2}, 0
    s_cselect_b32 s18, {WS_BYTES}, 0""")
    P(lin(s.wq4, 0, (s.wq, 1), (s.w4k, 1)) + lin(s.w14, 0, (s.w1, 1), (s.w4k, 1)))
    stamp(22)


def rest_stores(t3f):
    o = [lin(s.t4, 0, (s.uf, 2048), (s.w1, 1)) + [f"buffer_store_dwordx4 {ar(PARK, 4)}, {vL16}, {SX}, {s.t4} offen sc1"],
         [f"buffer_store_dwordx4 {ar(PARK + 4, 4)}, {vL16}, {SX}, {s.t4} offen offset:1024 sc1"],
         lin(s.t4, 81920, (s.uf, 1024), (s.w1, 1)) + [f"buffer_store_dwordx4 {ar(PARK + 8, 4)}, {vL16}, {SX}, {s.t4} offen sc1"],
         lin(s.t4, 122880, (s.uf, 512), (s.w1, 1)) + ["s_mov_b32 exec_lo, 0xffff", "s_mov_b32 exec_hi, 0xffff",
                                                     f"buffer_store_dwordx4 {ar(PARK + 12, 4)}, {t3f}, {SX}, {s.t4} offen sc1",
                                                     "s_mov_b64 exec, -1"],
         lin(s.t4, 16 * 20480, (s.uf, 512), (s.csb, 1)) + [f"buffer_store_dwordx2 {ar(PARK + 36, 2)}, {AD[9]}, {SX}, {s.t4} offen sc1"]]
    o += [[f"buffer_store_dwordx4 {ar(PARK + 16 + 4 * t, 4)}, {vL16}, {SWQ}, {s.w2d} offen offset:{1024 * t} sc1"] for t in range(4)]
    o += [[f"s_add_u32 {s.t4}, {s.w2d}, 4096", f"buffer_store_dwordx4 {ar(PARK + 32, 4)}, {vL16}, {SWQ}, {s.t4} offen sc1"]]
    return [[I(x) for x in g] for g in o]


RSTD, CA, CB, MF = TMP + 12, TMP + 13, TMP + 14, TMP + 16


def stats_loads():
    ad = AD[10]
    pre = [f"v_and_b32 {vr(TMP)}, 31, {vLane}", f"v_lshrrev_b32 {ad}, 5, {vLane}",
           f"v_lshlrev_b32 {ad}, 11, {ad}", f"v_lshl_add_u32 {ad}, {vr(TMP)}, 3, {ad}"]
    ld = [[I(f"buffer_load_dwordx2 {vr(TMP + 2 * i, 2)}, {ad}, {WS}, {s.stl} offen offset:{512 * i} sc1")] for i in range(4)]
    return pre, ld


def stats_calc(ffn):
    t = [vr(TMP + i) for i in range(8)]
    o = [f"v_add_f32 {t[0]}, {t[0]}, {t[2]}", f"v_add_f32 {t[1]}, {t[1]}, {t[3]}",
         f"v_add_f32 {t[4]}, {t[4]}, {t[6]}", f"v_add_f32 {t[5]}, {t[5]}, {t[7]}",
         f"v_add_f32 {t[0]}, {t[0]}, {t[4]}", f"v_add_f32 {t[1]}, {t[1]}, {t[5]}",
         f"v_mov_b32 {t[2]}, {t[0]}", f"v_mov_b32 {t[3]}, {t[1]}",
         f"v_mov_b32 {vr(MF + 1)}, 0", f"v_mov_b32 {vr(MF + 2)}, 0",
         f"v_permlane32_swap_b32 {t[0]}, {t[2]}", f"v_permlane32_swap_b32 {t[1]}, {t[3]}",
         f"v_add_f32 {t[0]}, {t[0]}, {t[2]}", f"v_add_f32 {t[1]}, {t[1]}, {t[3]}",
         f"v_mul_f32 {t[0]}, {f32(-1 / 640)}, {t[0]}", f"v_mul_f32 {t[1]}, {f32(1 / 640)}, {t[1]}",
         f"v_fma_f32 {t[1]}, -{t[0]}, {t[0]}, {t[1]}", f"v_max_f32 {t[1]}, 0, {t[1]}",
         f"v_add_f32 {t[1]}, {f32(1e-5)}, {t[1]}", f"v_rsq_f32 {vr(RSTD)}, {t[1]}",
         f"v_cvt_pk_bf16_f32 {t[2]}, {t[0]}, {t[0]}", f"v_and_b32 {t[3]}, 0xffff0000, {t[2]}",
         f"v_sub_f32 {t[3]}, {t[0]}, {t[3]}", f"v_cvt_pk_bf16_f32 {t[3]}, {t[3]}, {t[3]}",
         f"v_cndmask_b32 {vr(MF)}, {t[2]}, {t[3]}, {HALF}", f"v_mov_b32 {vr(MF + 3)}, {vr(MF)}"]
    if ffn:
        o += [f"v_mul_f32 {vr(CA)}, {f32(-math.log2(math.e))}, {vr(RSTD)}", f"v_mul_f32 {vr(CB)}, {t[1]}, {vr(RSTD)}"]
    else:
        o += [f"v_mul_f32 {vr(CA)}, {f32(math.log2(math.e) / math.sqrt(20))}, {vr(RSTD)}"]
    return o


def corr(t, acc, which):
    return mf8(acc, ar(CSA + 4 * which + 2 * (t >> 1), 2), vr(MF + 2 * (t & 1), 2), acc)


def colsum_loads(which, park):
    out = []
    for i in range(10):
        g = [I(x) for x in lin(s.t8, which * 16 * 20480 + 512 * i, (s.w, 5120), (s.csb, 1))] if i % 8 == 0 else []
        out.append(g + [I(f"buffer_load_dwordx2 {ar(park + 2 * i, 2)}, {AD[9]}, {WS}, {s.t8} offen offset:{512 * (i % 8)} sc1")])
    return out


def colsum_put(d, park, lds):
    o = [f"v_accvgpr_read_b32 {vr(d)}, {ar(park)}", f"v_accvgpr_read_b32 {vr(d + 1)}, {ar(park + 1)}"]
    for i in range(1, 10):
        o += [f"v_accvgpr_read_b32 {vr(d + 2)}, {ar(park + 2 * i)}", f"v_accvgpr_read_b32 {vr(d + 3)}, {ar(park + 2 * i + 1)}",
              f"v_add_f32 {vr(d)}, {vr(d)}, {vr(d + 2)}", f"v_add_f32 {vr(d + 1)}, {vr(d + 1)}, {vr(d + 3)}"]
    o += lin(s.t8, lds, (s.w, 512))
    o += [f"v_add_u32 {vr(d + 2)}, {s.t8}, {AD[9]}", f"ds_write_b64 {vr(d + 2)}, {vr(d, 2)}"]
    return o


def colsum_get(d, which, lds, ad):
    o = [f"v_and_b32 {ad}, 0xff, {AD[9]}", f"v_add_u32 {ad}, {lds}, {ad}"]
    o += [f"ds_read_b64 {vr(d + 2 * i, 2)}, {ad} offset:{256 * i}" for i in range(8)]
    for i in (1, 2, 3):
        o += [f"v_add_f32 {vr(d + e)}, {vr(d + e)}, {vr(d + 4 * i + e)}" for e in range(4)]
    for t, e in enumerate((0, 2, 1, 3)):
        c, h = vr(d + e), vr(d + 4 + e)
        o += [f"v_cvt_pk_bf16_f32 {h}, {c}, {c}", f"v_and_b32 {h}, 0xffff0000, {h}", f"v_sub_f32 {c}, {c}, {h}",
              f"v_cvt_pk_bf16_f32 {c}, {h}, {c}", f"v_accvgpr_write_b32 {ar(CSA + 4 * which + t)}, {c}"]
    return o


def lds_rd(dst, addr):
    base = (vL16, vL16b, vL16c)[addr >> 16]
    return f"ds_read_b128 {dst}, {base} offset:{addr & 0xffff}"


def ring_reads(B, reads):
    ins = [I(f(ar(WB + 4 * (i % 6), 4))) for i, (_, f) in enumerate(reads)]
    for i, (b, _) in enumerate(reads):
        if i % 2 == 0 and i + 1 < len(reads):
            B.at(b, wait_lg(ins[min(i + 2, len(reads) - 1)]))
        if i + 6 < len(reads):
            B.at(b, ins[i + 6])
    return ins[:6]


def a_waits(B, A, per):
    for k in range(len(A) - 1):
        B.at(per * k + per - 1, wait_vm(A[k + 1][-1]))


QA, QSA, QSB, QB = TMP, TMP + 4, TMP + 6, TMP + 8
vKa, vKs, vDm = AD[0], AD[1], AD[2]
vT = [[AD[3], AD[4]], [AD[5], AD[6]]]


def p1(B1):
    acc = [vr(ACC + 16 * t, 16) for t in range(4)]
    t3a, gV, gV2, lV, lV2 = AD[3], AD[4], AD[5], AD[6], AD[7]
    tok, hf, u = vr(TMP + 20), vr(TMP + 21), vr(TMP + 22)
    P(lane_parts32(tok, hf))
    P(f"""v_min_u32 {u}, 23, {tok}
    v_mad_u32_u24 {t3a}, {hf}, 24, {u}
    v_lshlrev_b32 {t3a}, 4, {t3a}
    v_add_u32 {t3a}, 122880, {t3a}
    v_lshlrev_b32 {AD[9]}, 3, {vLane}
    v_add_u32 {vKa}, {s.kvw}, {vL16}
    v_add_u32 {vKs}, {s.kvw}, {AD[9]}
    v_lshlrev_b32 {vDm}, 2, {hf}
    v_xor_b32 {gV}, {vLane}, {vDm}
    v_lshlrev_b32 {gV}, 4, {gV}
    v_add_u32 {lV}, {s.kvw}, {gV}
    v_xor_b32 {gV2}, 8, {tok}
    v_lshlrev_b32 {gV2}, 4, {gV2}
    v_mul_u32_u24 {u}, 1536, {hf}
    v_add_u32 {gV2}, {gV2}, {u}
    v_add_u32 {lV2}, {s.kvw}, {gV2}
    v_sub_u32 {vDm}, {tok}, {vDm}""")
    ms, reads = [], []
    slot = lambda: ar(WB + 4 * ((len(reads) - 1) % 6), 4)
    for k in range(40):
        for t in range(3):
            reads.append((len(ms), (lambda d, a=3072 * k + 1024 * t: lds_rd(d, a))))
            ms.append(mf32(acc[t], slot(), xfrag(k), acc[t] if k else 0))
    ms += [corr(t, acc[t], 0) for t in (1, 2, 0)]
    p2b = len(ms)
    for k in range(40):
        reads.append((len(ms), (lambda d, a=768 * k: f"ds_read_b128 {d}, {t3a} offset:{a}")))
        ms.append(mf32(acc[3], slot(), xfrag(k), acc[3] if k else 0))
    ms.append(corr(3, acc[3], 0))
    B = Beats(ms)
    first = ring_reads(B, reads)
    if LAYER == 0:
        t3f = AD[8]
        P(f"""v_and_b32 {u}, 15, {tok}
        v_lshl_add_u32 {t3f}, {hf}, 4, {u}
        v_lshlrev_b32 {t3f}, 4, {t3f}
        v_bfe_u32 {tok}, {vLane}, 2, 1
        v_lshlrev_b32 {tok}, 7, {tok}
        v_lshrrev_b32 {hf}, 3, {vLane}
        s_lshl_b32 {s.t0}, {s.cs16}, 3
        v_add3_u32 {tok}, {tok}, {hf}, {s.t0}
        v_and_b32 {hf}, 3, {vLane}
        v_lshlrev_b32 {hf}, 2, {hf}
        v_lshl_add_u32 {tok}, {tok}, 7, {hf}
        s_mov_b32 {s.t0}, {GL}""")
        poll(tok, s.t0, 1, hf)
        P("s_waitcnt lgkmcnt(0)\ns_barrier")
        stamp(3)
        stop_after(0)
        grp = [B1.take(4) for _ in range(9)] + [B1.take(2)]
        P(flat(grp[0]) + flat(grp[1]) + flat(grp[2]))
        P(wait_vm(grp[0][-1][-1]))
        P("s_barrier")
        rs = rest_stores(t3f)
        cld = colsum_loads(0, YA)
        extra = {3: cld[:5], 4: cld[5:], 5: rs[:5], 6: rs[5:]}
        for n in range(1, 10):
            nb = (16 * n - 7) if n < 8 else (p2b + 3, p2b + 25)[n - 8]
            B.at(nb, wait_vm(grp[n][-1][-1]))
            if n == 7:
                B.at(nb, wait_vm(rs[-1][-1]))
            B.at(nb, "s_barrier")
            if n + 2 < 10:
                B.every(grp[n + 2] + extra.get(n + 2, []), max(0, 16 * (n - 1) - 6), 1.6)
        d = ACC + 48
        put = [I(x) for x in colsum_put(d, YA, 157696)]
        e = B.spread(put + [f"v_mov_b32 {vr(FLAGV)}, 1"], 62)
        assert e < 88, e
        B.at(88, wait_lg(put[-1]))
        B.spread(colsum_get(d, 0, 157696, vr(TMP + 20)), 90, 118)
        B.at(106, [I(f"s_cmp_eq_u32 {s.w}, 0"), I("s_cselect_b64 exec, 1, 0"),
                   I(f"buffer_store_dword {vr(FLAGV)}, {vLane}, {WS}, {s.gl} offen offset:16 sc1"), I("s_mov_b64 exec, -1")])
    else:
        pre, sld = stats_loads()
        P(pre)
        P(f"v_lshlrev_b32 {u}, 2, {vLane}\nv_and_b32 {u}, 63, {u}")
        poll(u, s.fxr, 2, tok)
        stamp(3)
        A = RegStream([xfrag(k) for k in range(40)], s.xld, s.oA, weight=False).take()
        P(flat(A[:8]))
        P("s_barrier")
        a_waits(B, A, 3)
        e = B.every(A[8:] + sld, 0, 2.25)
        B.every(B1.take(), e, 4)
        B.spread(stats_calc(False), 100, 118)
        B.at(p2b + 3, wait_vm(B1.last))
        B.at(p2b + 3, "s_barrier")
    P(first)
    g = lambda gs, r: vr(ACC + 4 * gs + r)

    def pack(gs, dst, scale):
        o = [f"v_mul_f32 {g(gs, r)}, {vr(scale)}, {g(gs, r)}" for r in range(4)]
        return o + [f"v_cvt_pk_bf16_f32 {vr(dst + i)}, {g(gs, 2 * i)}, {g(gs, 2 * i + 1)}" for i in range(2)]

    KA_, KS_, KB_ = ACC, ACC + 4, ACC + 8
    VA_, V2_, VB_ = ACC + 20, ACC + 24, ACC + 28
    own = 8 * KV_T
    base = KV_L * LAYER
    ep = [f"s_add_u32 {s.t2}, {s.kst}, {base + 2560}", f"s_add_u32 {s.t3}, {s.kst}, {base}"]
    ep += pack(5, VA_, RSTD) + pack(6, VA_ + 2, RSTD) + pack(7, V2_, RSTD)
    ep += [f"v_permlane32_swap_b32 {vr(VA_)}, {vr(VA_ + 2)}", f"v_permlane32_swap_b32 {vr(VA_ + 1)}, {vr(VA_ + 3)}",
           f"v_mov_b32 {vr(V2_ + 2)}, {s.ones}", f"v_mov_b32 {vr(V2_ + 3)}, {s.ones}",
           f"buffer_store_dwordx4 {vr(VA_, 4)}, {gV}, {WS}, {s.t2} offen sc1"]
    ep += pack(8, VB_, RSTD)
    ep += [f"buffer_store_dwordx4 {vr(V2_, 4)}, {gV2}, {WS}, {s.t2} offen offset:1024 sc1"]
    ep += pack(9, VB_ + 2, RSTD) + pack(0, KA_, RSTD)
    ep += [f"v_permlane32_swap_b32 {vr(VB_)}, {vr(VB_ + 2)}", f"v_permlane32_swap_b32 {vr(VB_ + 1)}, {vr(VB_ + 3)}",
           f"buffer_store_dwordx4 {vr(VB_, 4)}, {gV}, {WS}, {s.t2} offen offset:1536 sc1"]
    ep += pack(1, KA_ + 2, RSTD) + [f"buffer_store_dwordx4 {vr(KA_, 4)}, {vL16}, {WS}, {s.t3} offen sc1"]
    ep += pack(2, KS_, RSTD) + [f"buffer_store_dwordx2 {vr(KS_, 2)}, {AD[9]}, {WS}, {s.t3} offen offset:2048 sc1"]
    ep += pack(3, KB_, RSTD) + pack(4, KB_ + 2, RSTD)
    lastst = I(f"buffer_store_dwordx4 {vr(KB_, 4)}, {vL16}, {WS}, {s.t3} offen offset:1024 sc1")
    ep += [lastst]
    q = pack(10, QA, CA) + pack(11, QA + 2, CA) + [f"v_mov_b32 {vr(FLAGV)}, {LAYER + 1}"]
    wr = [f"ds_write_b128 {vKa}, {vr(KA_, 4)} offset:{own}", f"ds_write_b64 {vKs}, {vr(KS_, 2)} offset:{own + 2048}",
          f"ds_write_b128 {lV}, {vr(VA_, 4)} offset:{own + 2560}", f"ds_write_b128 {lV2}, {vr(V2_, 4)} offset:{own + 3584}",
          f"ds_write_b128 {vKa}, {vr(KB_, 4)} offset:{own + 1024}", f"ds_write_b128 {lV}, {vr(VB_, 4)} offset:{own + 4096}"]
    for i, x in enumerate(wr):
        ep += ["|", x] + q[3 * i: 3 * i + 3] + ["|"]
    B.spread(ep, p2b + 1)
    B.emit(1)
    stamp(4)
    P(f"""v_and_b32 {tok}, 3, {vLane}
    v_bfe_u32 {hf}, {vLane}, 4, 1
    v_cmp_ne_u32 vcc, 0, {hf}
    v_lshrrev_b32 {u}, 1, {tok}
    v_cndmask_b32 {u}, {u}, 2, vcc
    v_bfe_u32 {hf}, {vLane}, 2, 2
    v_lshrrev_b32 {vT[0][0]}, 5, {vLane}
    v_lshl_add_u32 {hf}, {vT[0][0]}, 2, {hf}
    v_lshlrev_b32 {vT[0][0]}, 2, {u}
    v_xor_b32 {hf}, {hf}, {vT[0][0]}
    v_lshlrev_b32 {hf}, 4, {hf}
    v_lshl_add_u32 {hf}, {u}, 9, {hf}
    v_and_b32 {u}, 1, {tok}
    v_min_u32 {vT[0][0]}, 1, {tok}
    v_cndmask_b32 {vT[0][0]}, {u}, {vT[0][0]}, vcc
    v_xor_b32 {tok}, 1, {tok}
    v_min_u32 {vT[1][0]}, 1, {tok}
    v_cndmask_b32 {vT[1][0]}, {u}, {vT[1][0]}, vcc
    v_lshl_add_u32 {vT[0][0]}, {vT[0][0]}, 3, {hf}
    v_lshl_add_u32 {vT[1][0]}, {vT[1][0]}, 3, {hf}
    v_xor_b32 {vT[0][1]}, 0x80, {vT[0][0]}
    v_xor_b32 {vT[1][1]}, 0x80, {vT[1][0]}""")
    for x in vT[0] + vT[1]:
        P(f"v_add_u32 {x}, {s.kvw}, {x}")
    P(pack(12, QSA, CA) + pack(13, QB, CA) + pack(14, QB + 2, CA))
    P(wait_vm(lastst))
    P(flag_store(s.fkw, True))
    P(f"""v_cndmask_b32 {vr(QSB)}, 0, {vr(QSA)}, {HALF}
    v_cndmask_b32 {vr(QSB + 1)}, 0, {vr(QSA + 1)}, {HALF}
    v_cndmask_b32 {vr(QSA)}, {vr(QSA)}, 0, {HALF}
    v_cndmask_b32 {vr(QSA + 1)}, {vr(QSA + 1)}, 0, {HALF}""")
    if LAYER == 0:
        a, b, c = tok, hf, u
        P(f"""v_and_b32 {a}, 3, {vLane}
        v_lshlrev_b32 {a}, 6, {a}
        v_bfe_u32 {b}, {vLane}, 2, 3
        s_lshl_b32 {s.t0}, {s.cs8}, 3
        v_add3_u32 {a}, {a}, {b}, {s.t0}
        v_lshl_add_u32 {a}, {a}, 7, 16
        v_and_b32 {b}, 15, {vLane}
        s_and_b32 {s.t0}, s2, 0x87
        v_lshl_add_u32 {b}, {b}, 3, {s.t0}
        v_lshl_add_u32 {b}, {b}, 7, 4
        v_cndmask_b32 {a}, {a}, {b}, {HALF}
        s_mov_b32 {s.t0}, {GL}""")
        poll(a, s.t0, 1, b)
        P(f"v_cmp_ne_u32 vcc, {s.xcc}, {b}\ns_mov_b32 {s.slow}, {1 if OPT['force_slow'] else 'vcc_hi'}")
    stamp(5)


SB = [ACC, ACC + 16]
OA = [ACC + 32, ACC + 48]
PB, MK = XV, XV + 8
KX, KS, V0, V1 = XA, XA + 4, XA + 8, XA + 12


def o_stores():
    return [f"buffer_store_dwordx4 {vr(PB, 4)}, {AD[7]}, {WS}, {s.o1} offen",
            f"buffer_store_dwordx4 {vr(PB + 4, 4)}, {AD[7]}, {WS}, {s.o1} offen offset:512",
            f"buffer_store_dwordx2 {vr(MK, 2)}, {AD[8]}, {WS}, {s.o2} offen"]


def p2(pre_loads, body_loads):
    base = lambda u: (8 - (u >> 1)) * KV_T
    rdK = lambda u: I(f"ds_read_b128 {ar(KX, 4)}, {vKa} offset:{base(u) + 1024 * (u & 1)}")
    rdS = lambda u: I(f"ds_read_b64 {ar(KS, 2)}, {vKs} offset:{base(u) + 2048}")
    rdV = lambda u, st: [I(f"ds_read_b64_tr_b16 {ar((V0, V1)[st] + 2 * h, 2)}, {vT[u & 1][h]} "
                           f"offset:{base(u) + 2560 + 1536 * (u & 1) + 256 * st}") for h in range(2)]
    cin = lambda u: vr(MK, 16) if u < 2 or u >= 16 else "0"
    qk16 = lambda u: mf32(vr(SB[u & 1], 16), ar(KX, 4), vr((QA, QB)[u & 1], 4), cin(u))
    qk8 = lambda u: mf8(vr(SB[u & 1], 16), ar(KS, 2), vr((QSA, QSB)[u & 1], 2), vr(SB[u & 1], 16))
    pv = lambda u, st: mf32(vr(OA[u & 1], 16), ar((V0, V1)[st], 4), vr(PB + 4 * st, 4),
                            "0" if (u < 2 and st == 0) else vr(OA[u & 1], 16))

    def E(u, q):
        b = SB[u & 1] + 4 * q
        return [f"v_exp_f32 {vr(b + r)}, {vr(b + r)}" for r in range(4)] + \
               [f"v_cvt_pk_bf16_f32 {vr(PB + 2 * q + i)}, {vr(b + 2 * i)}, {vr(b + 2 * i + 1)}" for i in range(2)]

    P([rdK(0), rdS(0)] + rdV(0, 0))
    P(flat(pre_loads))
    for r in range(16):
        c = 8 * (r >> 2) + (r & 3)
        P(f"v_subrev_u32 {vr(MK + r)}, {c}, {vDm}\nv_and_b32 {vr(MK + r)}, {s.ninf}, {vr(MK + r)}")
    P([qk16(0), rdK(1), qk8(0)])
    tok, hf = vr(TMP + 20), vr(TMP + 21)
    h1, h2, pa = vr(TMP + 12), vr(TMP + 13), vr(TMP + 14)
    P(lane_parts32(tok, hf))
    P(f"""v_lshrrev_b32 {AD[8]}, 4, {tok}
    v_mul_u32_u24 {AD[8]}, 20480, {AD[8]}
    v_and_b32 {tok}, 15, {tok}
    v_lshl_add_u32 {AD[8]}, {tok}, 4, {AD[8]}
    v_lshl_add_u32 {AD[7]}, {hf}, 8, {AD[8]}
    v_lshl_add_u32 {AD[8]}, {hf}, 3, {AD[8]}
    s_cmp_ge_u32 {s.g}, 1
    s_cselect_b32 {s.t2}, 0, {OOB}
    s_cselect_b32 {s.t4}, 0, 128
    s_cmp_ge_u32 {s.g}, 2
    s_cselect_b32 {s.t3}, 0, {OOB}
    s_cselect_b32 {s.t5}, 0, 256
    s_add_u32 {s.t4}, {s.t4}, 128
    s_sub_u32 {s.t4}, {s.t4}, {s.t5}
    v_add_u32 {h1}, {s.t2}, {vL16}
    v_add_u32 {h2}, {s.t3}, {vL16}
    v_bfe_u32 {pa}, {vLane}, 2, 1
    v_mul_lo_u32 {pa}, {pa}, {s.t4}
    v_and_b32 {tok}, 3, {vLane}
    v_lshl_add_u32 {pa}, {tok}, 2, {pa}
    v_add_u32 {pa}, {s.t5}, {pa}""")
    extra = touch_loads(o_stores()) + body_loads
    nslot = 31
    quota = [len(extra) * (i + 1) // nslot - len(extra) * i // nslot for i in range(nslot)]
    stg = []

    def ex():
        return flat([extra.pop(0) for _ in range(quota.pop(0))])

    for u in range(18):
        nxt = u + 1 < 18 and u != 1
        if u == 2:
            for r in range(16):
                P(f"v_xor_b32 {vr(MK + r)}, {s.ninf}, {vr(MK + r)}")
            if LAYER == 0:
                P(colsum_put(XV + 24, WB, 69632))
            poll(pa, s.fkr, LAYER + 1, tok)
            stamp(6)
            for j in range(4):
                d = (6 - 2 * j) * KV_T
                P(f"s_add_u32 m0, {s.hw}, {d}\ns_add_u32 {s.oA}, {s.kld}, {d + KV_L * LAYER}")
                for i in range(3):
                    last = P(f"buffer_load_dwordx4 {h1 if j < 2 else h2}, {WS}, {s.oA} offen offset:{1024 * i} sc1 lds")
                stg.append(last)
            P(wait_vm(stg[0]))
            P("s_waitcnt lgkmcnt(0)\ns_barrier")
            stamp(7)
            P([rdK(2), rdS(2)] + rdV(2, 0))
            if LAYER == 0:
                P(colsum_get(XV + 24, 1, 69632, tok))
            P([qk16(2), rdK(3), qk8(2)])
        if nxt:
            P(qk16(u + 1))
            if u > 2:
                P(wait_lg(prevV1))
            if u in (4, 8, 12):
                P(wait_vm(stg[u // 4]))
                P("s_barrier")
            if u + 2 < 18 and u != 0:
                lastK = P(rdK(u + 2))
            if u >= 2:
                P(ex())
        P(E(u, 0))
        if nxt:
            P(qk8(u + 1))
        P(E(u, 1))
        if u > 0:
            P(pv(u - 1, 1))
            if u >= 2 and u + 2 < 18:
                P(wait_lg(lastK))
        if u % 2 == 0 and u >= 2 and u + 2 < 18:
            P(rdS(u + 2))
        prevV1 = P(rdV(u, 1))
        P(E(u, 2))
        P(pv(u, 0))
        if nxt:
            P(rdV(u + 1, 0))
        if u >= 2:
            P(ex())
        P(E(u, 3))
    P(pv(17, 1))
    assert not extra, len(extra)
    la, lb = vr(OA[0] + 12), vr(OA[1] + 12)
    lo, hi = (127 - 40) << 23, (127 + 40) << 23
    if OPT["force_fallback"]:
        hi = lo
    P(f"""s_mov_b32 {s.t2}, {hi - lo}
    s_mov_b32 {s.t8}, {LAYER}
    v_subrev_u32 {tok}, {lo}, {la}
    v_subrev_u32 {hf}, {lo}, {lb}
    v_max_u32 {tok}, {tok}, {hf}
    v_cmp_lt_u32 vcc, {s.t2}, {tok}
    s_cbranch_{"execz" if OPT["nob"] else "vccnz"} L_truemax
    L_norm{LAYER}:
    v_rcp_f32 {tok}, {la}
    v_rcp_f32 {hf}, {lb}""")
    for hd in range(2):
        for r in range(0, 12, 2):
            P(f"v_pk_mul_f32 {vr(OA[hd] + r, 2)}, {vr(OA[hd] + r, 2)}, {vr(TMP + 20, 2)} op_sel:[0,{hd}] op_sel_hi:[1,{hd}]")
        for i in range(4):
            P(f"v_cvt_pk_bf16_f32 {vr(PB + 4 * hd + i)}, {vr(OA[hd] + 2 * i)}, {vr(OA[hd] + 2 * i + 1)}")
        for i in range(2):
            P(f"v_cvt_pk_bf16_f32 {vr(MK + 2 * hd + i)}, {vr(OA[hd] + 8 + 2 * i)}, {vr(OA[hd] + 9 + 2 * i)}")
    P(f"""v_cndmask_b32 {vr(MK)}, {vr(MK)}, {vr(MK + 2)}, {HALF}
    v_cndmask_b32 {vr(MK + 1)}, {vr(MK + 1)}, {vr(MK + 3)}, {HALF}""")
    P(dual(o_stores()))
    stamp(8)
    set_flag(s.fow, 2 * LAYER + 1)
    P("s_barrier")


def truemax_path():
    T = Prog()
    S_, m, m2 = SB[0], vr(TMP + 20), vr(TMP + 21)
    ak, as_, av0, av1 = vr(TMP + 22), vr(TMP + 23), vr(TMP + 12), vr(TMP + 13)
    q4, q2, O_ = MK, MK + 4, SB[1]
    n, i, ps, hd, flip, sel = s.t2, s.t3, s.t4, s.t5, s.t6, s.t7
    top = 8 * KV_T
    T(f"""L_truemax:
    s_nop 15
    s_lshl_b32 {n}, {s.g}, 2
    s_add_u32 {n}, {n}, {s.w}
    s_add_u32 {n}, {n}, 1
    s_min_u32 {n}, {n}, 9
    s_mov_b32 {hd}, 0""")
    for r in range(4):
        T(f"v_mov_b32 {vr(q4 + r)}, {vr(QA + r)}")
    T(f"""v_mov_b32 {vr(q2)}, {vr(QSA)}
    v_mov_b32 {vr(q2 + 1)}, {vr(QSA + 1)}
    L_tm_head:
    v_mov_b32 {m}, {s.ninf}
    s_mov_b32 {ps}, 0""")
    for r in range(16):
        T(f"v_mov_b32 {vr(O_ + r)}, 0")
    T(f"""L_tm_pass:
    s_mov_b32 {i}, 0
    s_lshl_b32 {flip}, {hd}, 10
    s_add_u32 {flip}, {flip}, {top}
    v_add_u32 {ak}, {flip}, {vKa}
    v_add_u32 {as_}, {top + 2048}, {vKs}
    v_add_u32 {av0}, {top + 2560}, {vT[0][0]}
    v_add_u32 {av1}, {top + 2560}, {vT[0][1]}
    s_cmp_eq_u32 {hd}, 0
    s_cbranch_scc1 L_tm_tile
    v_add_u32 {av0}, {top + 4096}, {vT[1][0]}
    v_add_u32 {av1}, {top + 4096}, {vT[1][1]}
    L_tm_tile:
    ds_read_b128 {ar(KX, 4)}, {ak}
    ds_read_b64 {ar(KS, 2)}, {as_}""")
    for st in range(2):
        for h in range(2):
            T(f"ds_read_b64_tr_b16 {ar((V0, V1)[st] + 2 * h, 2)}, {(av0, av1)[h]} offset:{256 * st}")
    T(f"""s_cmp_eq_u32 {i}, 8
    s_cselect_b32 {flip}, -1, 0
    s_and_b32 {sel}, {i}, 7
    s_cselect_b32 {sel}, 0, {s.ninf}""")
    for r in range(16):
        c = 8 * (r >> 2) + (r & 3)
        T(f"""v_subrev_u32 {vr(S_ + r)}, {c}, {vDm}
        v_xor_b32 {vr(S_ + r)}, {flip}, {vr(S_ + r)}
        v_and_b32 {vr(S_ + r)}, {sel}, {vr(S_ + r)}""")
    T(mf32(vr(S_, 16), ar(KX, 4), vr(q4, 4), vr(S_, 16)))
    T(mf8(vr(S_, 16), ar(KS, 2), vr(q2, 2), vr(S_, 16)))
    T(f"s_waitcnt lgkmcnt(0)\ns_nop 15\ns_cmp_lg_u32 {ps}, 0\ns_cbranch_scc1 L_tm_exp")
    for r in range(0, 16, 2):
        T(f"v_max3_f32 {m}, {vr(S_ + r)}, {vr(S_ + r + 1)}, {m}")
    T("s_branch L_tm_next\nL_tm_exp:")
    for r in range(16):
        T(f"v_sub_f32 {vr(S_ + r)}, {vr(S_ + r)}, {m}")
    for r in range(16):
        T(f"v_exp_f32 {vr(S_ + r)}, {vr(S_ + r)}")
    for r in range(8):
        T(f"v_cvt_pk_bf16_f32 {vr(PB + r)}, {vr(S_ + 2 * r)}, {vr(S_ + 2 * r + 1)}")
    T(mf32(vr(O_, 16), ar(V0, 4), vr(PB, 4), vr(O_, 16)))
    T(mf32(vr(O_, 16), ar(V1, 4), vr(PB + 4, 4), vr(O_, 16)))
    T(f"""s_nop 15
    L_tm_next:
    v_subrev_u32 {ak}, {KV_T}, {ak}
    v_subrev_u32 {as_}, {KV_T}, {as_}
    v_subrev_u32 {av0}, {KV_T}, {av0}
    v_subrev_u32 {av1}, {KV_T}, {av1}
    s_add_u32 {i}, {i}, 1
    s_cmp_lt_u32 {i}, {n}
    s_cbranch_scc1 L_tm_tile
    s_cmp_lg_u32 {ps}, 0
    s_cbranch_scc1 L_tm_done
    v_mov_b32 {m2}, {m}
    v_permlane32_swap_b32 {m}, {m2}
    v_max_f32 {m}, {m}, {m2}
    s_mov_b32 {ps}, 1
    s_branch L_tm_pass
    L_tm_done:
    s_cmp_lg_u32 {hd}, 0
    s_cbranch_scc1 L_tm_last""")
    for r in range(16):
        T(f"v_mov_b32 {vr(OA[0] + r)}, {vr(O_ + r)}")
    for r in range(4):
        T(f"v_mov_b32 {vr(q4 + r)}, {vr(QB + r)}")
    T(f"""v_mov_b32 {vr(q2)}, {vr(QSB)}
    v_mov_b32 {vr(q2 + 1)}, {vr(QSB + 1)}
    s_mov_b32 {hd}, 1
    s_branch L_tm_head
    L_tm_last:""")
    for r in range(16):
        T(f"v_mov_b32 {vr(OA[1] + r)}, {vr(O_ + r)}")
    T(f"s_cmp_eq_u32 {s.t8}, 0\ns_cbranch_scc1 L_norm0\ns_branch L_norm1")
    T.resolve_waits()
    T.pad_hazards()
    P.tail += T.ins


def ksplit(nk, bfrag, aring, abase, astride, red, gap_loads, body_loads, body_at, epoch, sid):
    acc = lambda i, t: vr(ACC + 20 * (i & 1) + 4 * t, 4)
    BASE = ACC + 40
    wad, rad, u = AD[3], AD[4], vr(TMP + 22)
    sb = [s.t4, s.t5, s.t6, s.t7]
    wr = [s.t0, s.t1, s.t2]
    P(flat(gap_loads))
    for i in range(4):
        P(f"s_add_u32 {s.t8}, {s.w}, {i + 1}\ns_and_b32 {s.t8}, {s.t8}, 3")
        P(lin(sb[i], 0, (s.t8, astride), (abase, 1)))
        if i < 3:
            P(lin(wr[i], red + 5120 * i, (s.t8, 15360)))
    P(lin(s.t8, red, (s.w, 15360)))
    P(f"""v_add_u32 {rad}, {s.t8}, {vL16}
    v_lshlrev_b32 {u}, 2, {vLane}
    v_and_b32 {u}, 31, {u}""")
    for i in range(10):
        P(f"v_lshlrev_b32 {vr(BASE + 2 * i)}, 16, {vr(RES + i)}\nv_and_b32 {vr(BASE + 2 * i + 1)}, 0xffff0000, {vr(RES + i)}")
    poll(u, s.fo_r, epoch, vr(TMP + 20))
    stamp(sid)
    nr = len(aring)
    A = []
    for i in range(4):
        A += RegStream([aring[(i * nk + k) % nr] for k in range(nk)], sb[i], s.oA, weight=False).take()
    ms, lastuse, done = [], {}, {}
    for i in range(4):
        order = [(k, t) for k in range(nk) for t in range(5)]
        if nk == 5 and i >= 2:
            order = [(k, t) for t in range(5) for k in range(nk)]
        for k, t in order:
            lastuse[i * nk + k] = len(ms)
            done[(i, t)] = len(ms)
            ms.append(mf16(acc(i, t), bfrag(5 * k + t), aring[(i * nk + k) % nr], acc(i, t) if k else 0))
    B = Beats(ms)
    npre = 8
    P(flat(A[:npre]))
    b = 0
    for n in range(npre, 4 * nk):
        b = max(b, lastuse[n - nr] if n >= nr else 0)
        B.at(int(b), list(A[n]))
        b += 4.5
    B.every(body_loads, body_at[0], body_at[1])
    lastw = None
    b = 0
    for i in range(3):
        B.at(max(b, done[(i, 0)] + 7) - 1, f"v_add_u32 {wad}, {wr[i]}, {vL16}")
        for t in range(5):
            b = max(b, done[(i, t)] + 7)
            lastw = B.at(b, f"ds_write_b128 {wad}, {acc(i, t)} offset:{1024 * t}")
            b += 4 if nk > 5 else 3
    B.at(b, wait_lg(lastw))
    B.at(b, "s_barrier")
    PT = [TMP, ACC]
    rd = lambda p: [f"ds_read_b128 {vr(PT[p & 1] + 4 * t, 4)}, {rad} offset:{5120 * p + 1024 * t}" for t in range(5)]
    ad = lambda p: [f"v_add_f32 {vr(BASE + e)}, {vr(BASE + e)}, {vr(PT[p & 1] + e)}" for e in range(20)]
    B.spread(rd(0) + rd(1) + ["|", "|"] + ad(0) + rd(2) + ad(1) + ad(2), b)
    B.emit(3 if nk == 5 else 5)
    for t in range(5):
        for e in (0, 2):
            r = ACC + 20 + 4 * t + e
            P(f"v_pk_add_f32 {vr(r, 2)}, {vr(r, 2)}, {vr(BASE + 4 * t + e, 2)}")
    for i in range(10):
        P(f"v_cvt_pk_bf16_f32 {vr(RES + i)}, {vr(ACC + 20 + 2 * i)}, {vr(ACC + 21 + 2 * i)}")


def p3(gap_loads, body_loads):
    P(x_addr())
    aring = [vr(XV + 4 * i, 4) for i in range(10)] + [ar(XA + 4 * i, 4) for i in range(10)]
    ksplit(5, b3frag, aring, s.oal, 20480, 0, x_touch() + gap_loads, body_loads, (56, 5), 2 * LAYER + 1, 9)
    publish_x()
    stamp(10)
    set_flag(s.fxw, 2 * LAYER + 1)
    P("s_barrier")


def h_store(t, st, src):
    if t < 3:
        return f"buffer_store_dwordx4 {src}, {AD[0]}, {WS}, {s.h1} offen offset:{1024 * t + 512 * st}"
    return f"buffer_store_dwordx4 {src}, {AD[0]}, {WS}, {s.h2} offen"


def p4(B5, n_mid, n_late):
    acc = [vr(ACC + 16 * t, 16) for t in range(4)]
    t3a = AD[5]
    tok, hf, u = vr(TMP + 20), vr(TMP + 21), vr(TMP + 22)
    L = DmaStream(s.w14, 81920, 0, 4)
    P(flat(L.take(OPT.get("g34", 8))))
    pre, sld = stats_loads()
    P(pre)
    P(lane_parts32(tok, hf))
    P(f"""v_lshrrev_b32 {AD[0]}, 4, {tok}
    v_mul_u32_u24 {AD[0]}, 57344, {AD[0]}
    v_and_b32 {tok}, 15, {tok}
    v_lshl_add_u32 {t3a}, {hf}, 4, {tok}
    v_lshlrev_b32 {t3a}, 4, {t3a}
    v_add_u32 {AD[0]}, {AD[0]}, {t3a}
    v_lshlrev_b32 {u}, 2, {vLane}
    v_and_b32 {u}, 63, {u}""")
    poll(u, s.fxr, 2 * LAYER + 1, tok)
    stamp(11)
    ms, reads = [], []
    slot = lambda: ar(WB + 4 * ((len(reads) - 1) % 6), 4)
    for k in range(40):
        for t in range(2):
            reads.append((len(ms), (lambda d, a=81920 + 2048 * k + 1024 * t: lds_rd(d, a))))
            ms.append(mf32(acc[t], slot(), xfrag(k), acc[t] if k else 0))
    ms += [corr(t, acc[t], 1) for t in range(2)]
    pb2 = len(ms)
    for k in range(40):
        reads.append((len(ms), (lambda d, a=1024 * k: lds_rd(d, a))))
        ms.append(mf32(acc[2], slot(), xfrag(k), acc[2] if k else 0))
    ms.append(corr(2, acc[2], 1))
    pb3 = len(ms)
    for k in range(40):
        reads.append((len(ms), (lambda d, a=40960 + 512 * k: f"ds_read_b128 {d}, {t3a} offset:{a}")))
        ms.append(mf32(acc[3], slot(), xfrag(k), acc[3] if k else 0))
    ms.append(corr(3, acc[3], 1))
    B = Beats(ms)
    first = ring_reads(B, reads)
    A = RegStream([xfrag(k) for k in range(40)], s.xld, s.oA, weight=False).take()
    P(flat(A[:8]))
    P(first)
    a_waits(B, A, 2)
    e = B.every(A[8:24] + sld + A[24:], 0, 1.8)
    B.spread(stats_calc(True), 56, 78)
    B.at(73, "s_barrier")
    tl = touch_loads([h_store(t, st, "v0") for t in range(3) for st in range(2)] + [h_store(3, 0, "v0")])
    e = B.every(L.take() + tl, e, 2)
    B.at(pb2 + 25, wait_vm(L.last))
    B.at(pb2 + 25, "s_barrier")
    e = B.every(B5.take(n_mid), e, 2.6)
    B.every(B5.take(n_late), max(e, pb3 + 2), 2.6)

    def silu(t, n):
        o, b = [], ACC + 16 * t
        e0 = [vr(TMP + i) for i in range(4)]
        for p in range(n // 2):
            x0, x1 = vr(b + 2 * p), vr(b + 2 * p + 1)
            y0, y1 = e0[2 * (p & 1)], e0[2 * (p & 1) + 1]
            o += [f"v_mul_f32 {y0}, {vr(CA)}, {x0}", f"v_mul_f32 {y1}, {vr(CA)}, {x1}",
                  f"v_exp_f32 {y0}, {y0}", f"v_exp_f32 {y1}, {y1}",
                  f"v_fma_f32 {y0}, {y0}, {vr(CB)}, {vr(CB)}", f"v_fma_f32 {y1}, {y1}, {vr(CB)}, {vr(CB)}",
                  f"v_rcp_f32 {y0}, {y0}", f"v_rcp_f32 {y1}, {y1}",
                  f"v_mul_f32 {x0}, {x0}, {y0}", f"v_mul_f32 {x1}, {x1}, {y1}",
                  f"v_cvt_pk_bf16_f32 {vr(b + p)}, {x0}, {x1}"]
        o.append(dual([h_store(t, st, vr(b + 4 * st, 4)) for st in range(n // 8)]))
        return o

    e = B.spread(silu(0, 16) + silu(1, 16), pb2 + 3)
    B.spread(silu(2, 16), max(e, pb3 + 3))
    B.emit(4)
    P(silu(3, 8))
    stamp(12)
    set_flag(s.fow, 2 * LAYER + 2)
    P("s_barrier")


def p5(gap_loads, body_loads, body_at):
    aring = [vr(XV + 56 + 4 * i, 4) for i in range(21)] + [ar(WB + 4 * i, 4) for i in range(6)]
    if LAYER == 0:
        P(x_addr())
        gap_loads = gap_loads + x_touch()
    else:
        P(row_addr(AD[0], AD[1]))
    ksplit(14, b5frag, aring, s.hal, 57344, 102400, gap_loads, body_loads, body_at, 2 * LAYER + 2, 13)
    if LAYER == 0:
        publish_x()
        stamp(14)
        set_flag(s.fxw, 2)
        P("s_barrier")
    else:
        P(f"""buffer_store_dwordx4 {vr(RES, 4)}, {AD[0]}, {OUT}, {s.row} offen
        buffer_store_dwordx4 {vr(RES + 4, 4)}, {AD[0]}, {OUT}, {s.row} offen offset:64
        buffer_store_dwordx2 {vr(RES + 8, 2)}, {AD[1]}, {OUT}, {s.row} offen offset:128""")
        stamp(14)


def build():
    global LAYER
    o = OPT.get
    p0()
    B1 = DmaStream(s.wq4, 0, 0, 9, 2)
    for LAYER in range(2):
        p1(B1)
        stop_after(1)
        B3 = RegStream([b3frag(n) for n in range(25)], s.wo, s.oB)
        B4 = DmaStream(s.w14, 0, 81920, 5)
        B5 = RegStream([b5frag(n) for n in range(70)], s.w2, s.oB, first=51 * LAYER)
        if LAYER == 0:
            p2(colsum_loads(1, WB) + B3.take(o("a0", 4)), B3.take() + B4.take(o("b0", 12)))
            stop_after(2)
            p3(B4.take(), B5.take(o("c0", 8)))
            stop_after(3)
            nm = 51 - B5.i
            p4(B5, nm, 0)
            stop_after(4)
            B1 = DmaStream(s.wq4, 0, 0, 9, 2)
            p5(B5.take(), B1.take(24), (10, 9))
            stop_after(5)
            P(flat(B1.take(8)))
        else:
            p2(B3.take(o("a1", 8)), B3.take() + B4.take(o("b1", 12)))
            p3(B4.take(o("c1", 4)), B4.take())
            p4(B5, 0, o("d1", 12))
            p5(B5.take(), [], (0, 1))
    P("L_fin:")
    if OPT["stamps"]:
        P("s_waitcnt vmcnt(0)")
        P(lin(s.t0, STAMP, ("s2", 1024), (s.w, 256)))
        stamp(15)
        rstamp(61)
        P(f"v_lshlrev_b32 {vr(TMP)}, 2, {vLane}\nbuffer_store_dword {vStamp}, {vr(TMP)}, {WS}, {s.t0} offen")
    P("L_end:\ns_endpgm")
    truemax_path()
    P.resolve_waits()
    added = P.pad_hazards()
    P.ins = [x for x in P.ins if x.kind != "touch"]
    P.tail.append(I("L_code_end:"))
    return added


def main():
    out = sys.argv[1]
    for a in sys.argv[2:]:
        k, v = a.split("=")
        OPT[k] = float(v) if "." in v else int(v)
    added = build()
    K = NAME + "_kernel"
    txt = open("head.txt").read() + f"""; @launch grid=(256,1,1) block=(256,1,1) lds=163840
.amdgcn_target "amdgcn-amd-amdhsa--gfx950"
.text
.globl {K}
.p2align 8
.type {K},@function
{K}:
""" + P.text() + f""".section .rodata,"a"
.p2align 6
.amdhsa_kernel {K}
  .amdhsa_next_free_vgpr 512
  .amdhsa_next_free_sgpr 102
  .amdhsa_accum_offset 256
  .amdhsa_group_segment_fixed_size 0
  .amdhsa_kernarg_size 72
  .amdhsa_user_sgpr_count 2
  .amdhsa_user_sgpr_kernarg_segment_ptr 1
  .amdhsa_system_sgpr_workgroup_id_x 1
.end_amdhsa_kernel
"""
    open(out, "w").write(txt)
    print("instructions", len(P.ins) + len(P.tail), "wait states added", added, "sgprs", _sn)


if __name__ == "__main__":
    main()
```

```python
import math
import struct
import sys
from emit import Ins, I, Prog, wait_vm, wait_lg, sync_point

NAME = "interleave_layers__sliding_block__dense_activation_silu__prompt"
OPT = dict(probe=0, nob=0, stop=99, stamps=0, force_slow=0, force_fallback=0)

WQ_SL, W1_SL, WO_SL, W2_SL = 153600, 143360, 25600, 71680
KV_T = 5632
_off = 0


def _alloc(n):
    global _off
    o = _off
    _off = (_off + n + 4095) // 4096 * 4096
    return o


WQ = _alloc(16 * WQ_SL + 4096)
W1 = _alloc(16 * W1_SL + 4096)
WO = _alloc(32 * WO_SL)
W2 = _alloc(32 * W2_SL)
CS = _alloc(2 * 16 * 20480)
GL = _alloc(256 * 128)
KL = _alloc(256 * 128)
LF = _alloc(16 * 16 * 128)
ST = _alloc(32 * 4096)
XB = _alloc(64 * 40960)
OB = _alloc(128 * 20480)
HB = _alloc(128 * 57344)
KV = _alloc(2 * 256 * 4 * KV_T)
KV_L = 256 * 4 * KV_T
STAMP = _alloc(1024 * 256)
WS_BYTES = 268435456
OOB = 0x40000000
POLL_LIMIT = 20000

WS, OUT, SX, SWQ, SW1, SW2, DBG = "s[4:7]", "s[8:11]", "s[12:15]", "s[16:19]", "s[20:23]", "s[24:27]", "s[28:31]"
HALF = "s[48:49]"
_sn = 50
SR = {}


def sreg(name):
    global _sn
    if name not in SR:
        SR[name] = f"s{_sn}"
        _sn += 1
        assert _sn <= 102
    return SR[name]


class _S:
    def __getattr__(self, n):
        return sreg(n)


s = _S()
SR["w"] = "s3"
for _i in range(10):
    SR[f"t{_i}"] = f"s{32 + _i}"
for _i, _n in enumerate(("oA", "oB", "oD", "cnt")):
    SR[_n] = f"s{42 + _i}"

for _late, _early in (("slow", "okq"), ("wq4", "e0"), ("w14", "e1"), ("w2d", "X"), ("xcc", "j")):
    SR[_late] = sreg(_early)

vLane, vL16, vL16b, vL16c, vStamp = "v0", "v1", "v2", "v3", "v4"
AD = [f"v{i}" for i in range(5, 16)]
RES = 16
TMP = 26
ACC = 52
XV = 116
YA, XA, WB, CSA = 0, 204, 224, 248


def vr(b, n=1, k="v"):
    return f"{k}{b}" if n == 1 else f"{k}[{b}:{b + n - 1}]"


def ar(b, n=1):
    return vr(b, n, "a")


def xfrag(k):
    return ar(XA + 4 * k, 4) if k < 5 else vr(XV + 4 * (k - 5), 4)


def b5frag(n):
    return ar(YA + 4 * n, 4) if n < 51 else xfrag(n - 51)


def b3frag(n):
    return vr(XV + 40 + 4 * n, 4)


def f32(x):
    return "0x%08x" % struct.unpack("<I", struct.pack("<f", x))[0]


P = Prog()
LAYER = 0
_lab = 0


def label(p="L"):
    global _lab
    _lab += 1
    return f"{p}_{_lab}"


def lin(dst, const, *terms):
    o, first = [], True
    for r, c in terms:
        tgt = dst if first else s.lt
        if c == 1:
            if first and const:
                o.append(f"s_add_u32 {dst}, {r}, {const & 0xffffffff}")
                const = 0
            elif first:
                o.append(f"s_mov_b32 {dst}, {r}")
            else:
                o.append(f"s_add_u32 {dst}, {dst}, {r}")
        else:
            o.append(f"s_mul_i32 {tgt}, {r}, {c}")
            if not first:
                o.append(f"s_add_u32 {dst}, {dst}, {tgt}")
        first = False
    if const:
        o.append(f"s_add_u32 {dst}, {dst}, {const & 0xffffffff}")
    return o


def cls_of(x):
    if isinstance(x, list):
        return 1
    if x.kind in ("salu", "wait", "wantvm", "wantlg", "nop"):
        return 0
    if x.kind == "valu":
        return 2
    return 1


def cost_of(x):
    if isinstance(x, list):
        return sum(cost_of(y) for y in x)
    if x.kind in ("vld", "vst", "dma"):
        return 12
    if x.kind in ("label", "touch", "wantvm", "wantlg"):
        return 0
    if x.kind == "ldsw":
        return 20 if "b128" in x.op else 12
    if "permlane" in x.op:
        return 8
    if x.kind == "valu" and x.op.startswith(("v_exp", "v_rcp", "v_rsq")):
        return 8
    return 4


class Beats:
    def __init__(self, mfmas):
        self.m = [I(x) if isinstance(x, str) else x for x in mfmas]
        self.f = [[] for _ in self.m]
        self.cap = [32 if x.npass == 8 else 16 for x in self.m]
        self.used = [8 for _ in self.m]
        self.tail = []

    def at(self, b, x):
        for y in ([I(z.strip()) for z in x.split("\n")] if isinstance(x, str) else [x]):
            self.f[b].append(y)
            self.used[b] += cost_of(y)
        return y

    def every(self, items, b0, step):
        for i, grp in enumerate(items):
            self.at(min(int(b0 + i * step), len(self.m) - 1), list(grp))
        return min(int(b0 + len(items) * step), len(self.m) - 1)

    def spread(self, stream, b0, limit=None):
        b, last = b0, -1
        end = len(self.m) if limit is None else limit
        for x in stream:
            if x == "|":
                b, last = min(b + 1, end), -1
                continue
            x = I(x) if isinstance(x, str) else x
            c, k = cost_of(x), cls_of(x)
            if k < last:
                b += 1
            while b < end and self.used[b] + c > self.cap[b] and not (c > 12 and self.used[b] <= 16):
                b += 1
            if b >= end:
                if limit is None:
                    self.tail.append(x)
                else:
                    assert k == 2, "only VALU may overflow into the limit beat"
                    self.at(limit, x)
                continue
            self.at(b, x)
            last = k
        return b

    def emit(self, phase=-1):
        n = len(self.m)
        pts = [0, n // 4, n // 2, 3 * n // 4, 7 * n // 8, n - 1] if OPT["probe"] == phase + 10 * LAYER else []
        for b, (m, f) in enumerate(zip(self.m, self.f)):
            P(m)
            if b in pts:
                i = pts.index(b)
                P(f"s_memtime s[{PROBE + 2 * i}:{PROBE + 1 + 2 * i}]")
            for x in sorted(f, key=cls_of):
                P(x)
        for x in self.tail:
            P(x)
        if pts:
            P("s_memtime s[46:47]\ns_waitcnt lgkmcnt(0)")
            for i in range(6):
                P(f"v_writelane_b32 {vStamp}, s{PROBE + 2 * i}, {44 + i}")
            P(f"v_writelane_b32 {vStamp}, s46, 50")
            print("probe beats", pts, "tail", len(self.tail))


PROBE = 20


def mf32(d, a, b, c):
    return f"v_mfma_f32_32x32x16_bf16 {d}, {a}, {b}, {c}"


def mf8(d, a, b, c):
    return f"v_mfma_f32_32x32x8_bf16 {d}, {a}, {b}, {c}"


def mf16(d, a, b, c):
    return f"v_mfma_f32_16x16x32_bf16 {d}, {a}, {b}, {c}"


class RegStream:
    def __init__(self, dsts, base, so, first=0, weight=True):
        self.d, self.base, self.so, self.i, self.weight, self.last = dsts, base, so, first, weight, None

    def take(self, n=None):
        out, fresh = [], True
        n = len(self.d) - self.i if n is None else n
        for _ in range(n):
            i, g = self.i, []
            if fresh or i % 4 == 0:
                g.append(I(f"s_add_u32 {self.so}, {self.base}, {1024 * (i - i % 4)}"))
            g.append(I(f"buffer_load_dwordx4 {self.d[i]}, {vL16}, {WS}, {self.so} offen offset:{1024 * (i % 4)} sc1"))
            out.append([I("s_nop 0")] if OPT["nob"] and self.weight else g)
            self.last = out[-1][-1]
            self.i, fresh = i + 1, False
        return out


class DmaStream:
    def __init__(self, base, off0, lds0, groups, tailn=0):
        self.base, self.off0, self.lds0, self.groups, self.tailn = base, off0, lds0, groups, tailn
        self.i, self.n, self.last = 0, 4 * groups + tailn, None

    def take(self, n=None):
        out, fresh = [], True
        n = self.n - self.i if n is None else n
        for _ in range(n):
            i, g = self.i, []
            if fresh or i % 4 == 0:
                d = 16384 * (i // 4)
                g += [I(f"s_add_u32 m0, {s.w4k}, {self.lds0 + d}"), I(f"s_add_u32 {s.oD}, {self.base}, {self.off0 + d}")]
                if i // 4 == self.groups:
                    g += [I(f"s_mul_i32 {s.lt}, {s.w}, {1024 * (4 - self.tailn)}"), I(f"s_sub_u32 m0, m0, {s.lt}"),
                          I(f"s_sub_u32 {s.oD}, {s.oD}, {s.lt}")]
            g.append(I(f"buffer_load_dwordx4 {vL16}, {WS}, {s.oD} offen offset:{1024 * (i % 4)} sc1 lds"))
            out.append([I("s_nop 0")] if OPT["nob"] else g)
            self.last = out[-1][-1]
            self.i, fresh = i + 1, False
        return out


def flat(groups):
    return [x for g in groups for x in g]


def dual(stores):
    ins = [I(t) for t in stores]
    touch = Ins("", "touch")
    for x in ins:
        touch.src |= x.src
    a, b = label("L_wt"), label("L_bk")
    P.tail += [I(a + ":")] + [I(t + " sc1") for t in stores] + [I(f"s_branch {b}")]
    return [touch, I(f"s_cmp_lg_u32 {s.slow}, 0"), I(f"s_cbranch_scc1 {a}")] + ins + [I(b + ":")]


def wt(kind):
    return OPT.get(f"wt{LAYER}", 0) >> kind & 1


def handoff(stores, kind):
    return [I(t + " sc1") for t in stores] if wt(kind) else dual(stores)


def poll(voff, soff, epoch, vt, srd=WS):
    a, b = label("L_poll"), label("L_got")
    P(f"""s_mov_b32 {s.cnt}, {POLL_LIMIT}
    {a}:
    buffer_load_dword {vt}, {voff}, {srd}, {soff} offen sc1
    s_sub_u32 {s.cnt}, {s.cnt}, 1
    s_cbranch_scc1 {b}
    s_waitcnt vmcnt(0)
    v_cmp_gt_u32 vcc, {epoch}, {vt}
    s_cbranch_vccnz {a}
    {b}:
    s_waitcnt vmcnt(0)""")


def slow_poll(lab, voff, srd, vt):
    T = Prog()
    T(f"""{lab}:
    s_mov_b32 {s.cnt}, {POLL_LIMIT}
    {lab}2:
    buffer_load_dword {vt}, {voff}, {srd}, 0 offen sc1
    s_sub_u32 {s.cnt}, {s.cnt}, 1
    s_cbranch_scc1 {lab}3
    s_waitcnt vmcnt(0)
    v_cmp_gt_u32 vcc, 1, {vt}
    s_nop 0
    s_cbranch_vccnz {lab}2
    {lab}3:
    s_waitcnt vmcnt(0)
    s_branch {lab}ed""")
    P.tail += T.ins


FLAGV = TMP + 24


def flag_store(soff, always_wt, off=0):
    st = f"buffer_store_dword {vr(FLAGV)}, {vLane}, {WS}, {soff} offen offset:{off}"
    return [I("s_mov_b64 exec, 1")] + ([I(st + " sc1")] if always_wt else dual([st])) + [I("s_mov_b64 exec, -1")]


def set_flag(soff, epoch):
    P(f"v_mov_b32 {vr(FLAGV)}, {epoch}\ns_waitcnt vmcnt(0)")
    P(flag_store(soff, False))


RT_IDS = [3, 5, 8, 11, 12, 14]


def stamp(i):
    if not OPT["stamps"] or (OPT["stamps"] == 2 and i != 15):
        return
    P(f"s_memtime s[46:47]\ns_waitcnt lgkmcnt(0)\nv_writelane_b32 {vStamp}, s46, {24 * LAYER + i}")
    if i in RT_IDS and not OPT["probe"]:
        rstamp(44 + 6 * LAYER + RT_IDS.index(i))


def rstamp(i):
    if OPT["stamps"]:
        P(f"s_memrealtime s[46:47]\ns_waitcnt lgkmcnt(0)\nv_writelane_b32 {vStamp}, s46, {i}")


def stop_after(n):
    if OPT["stop"] == n and LAYER == 0:
        P("s_waitcnt vmcnt(0) lgkmcnt(0)\ns_branch L_fin")


def lane_parts32(tok, hf):
    return [f"v_and_b32 {tok}, 31, {vLane}", f"v_lshrrev_b32 {hf}, 5, {vLane}"]


def x_addr():
    t, q = vr(TMP), vr(TMP + 1)
    return [f"v_and_b32 {t}, 15, {vLane}", f"v_lshrrev_b32 {q}, 4, {vLane}",
            f"v_lshlrev_b32 {AD[0]}, 4, {t}", f"v_lshl_add_u32 {AD[0]}, {q}, 9, {AD[0]}",
            f"v_lshrrev_b32 {AD[2]}, 1, {q}", f"v_lshlrev_b32 {AD[1]}, 9, {AD[2]}",
            f"v_lshl_add_u32 {AD[1]}, {t}, 4, {AD[1]}", f"v_and_b32 {q}, 1, {q}",
            f"v_lshl_add_u32 {AD[1]}, {q}, 3, {AD[1]}", f"v_add_u32 {AD[1]}, 0x1000, {AD[1]}",
            f"v_lshlrev_b32 {AD[2]}, 2, {AD[2]}", f"v_lshl_add_u32 {AD[2]}, {t}, 3, {AD[2]}"]


def row_addr(a, b):
    t, q = vr(TMP), vr(TMP + 1)
    return [f"v_and_b32 {t}, 15, {vLane}", f"v_lshrrev_b32 {q}, 4, {vLane}", f"v_mul_u32_u24 {t}, 1280, {t}",
            f"v_lshl_add_u32 {a}, {q}, 4, {t}", f"v_lshl_add_u32 {b}, {q}, 3, {t}"]


def x_stores():
    return [f"buffer_store_dwordx4 {vr(RES, 4)}, {AD[0]}, {WS}, {s.xst} offen",
            f"buffer_store_dwordx4 {vr(RES + 4, 4)}, {AD[0]}, {WS}, {s.xst} offen offset:2048",
            f"buffer_store_dwordx2 {vr(RES + 8, 2)}, {AD[1]}, {WS}, {s.xst} offen"]


def publish_x(kind):
    P(handoff(x_stores(), kind))
    a, b = vr(TMP), vr(TMP + 1)
    for i in range(10):
        P(f"v_dot2_f32_bf16 {a}, {vr(RES + i)}, {s.ones}, {a if i else 0}")
        P(f"v_dot2_f32_bf16 {b}, {vr(RES + i)}, {vr(RES + i)}, {b if i else 0}")
    P(f"""v_permlane32_swap_b32 {a}, {b}
    v_add_f32 {a}, {a}, {b}
    v_mov_b32 {b}, {a}
    v_permlane16_swap_b32 {a}, {b}
    v_add_f32 {a}, {a}, {b}""")
    P(handoff([f"buffer_store_dword {a}, {AD[2]}, {WS}, {s.stw} offen"], kind))


def touch_loads(stores):
    return [[I(f"buffer_load_dword {vr(TMP + 25)},{t.split(',', 1)[1]} sc1")] for t in stores]


def x_touch(kind):
    return [] if wt(kind) else touch_loads(x_stores() + [f"buffer_store_dword v0, {AD[2]}, {WS}, {s.stw} offen"])


def srd(n, lo, size):
    b = int(n[2:].split(":")[0])
    return f"s_mov_b32 s{b}, s{lo}\ns_mov_b32 s{b + 1}, s{lo + 1}\ns_mov_b32 s{b + 2}, {size}\ns_mov_b32 s{b + 3}, 0x20000"


def colsum_partial(fr, out):
    p = [vr(out + t) for t in (0, 2, 1, 3)]
    o = [f"v_dot2_f32_bf16 {p[t]}, {vr(fr + 4 * t + i)}, {s.ones}, {p[t] if i else 0}" for i in range(4) for t in range(4)]
    return o + [f"v_permlane32_swap_b32 {p[0]}, {p[1]}", f"v_permlane32_swap_b32 {p[2]}, {p[3]}",
                f"v_add_f32 {p[0]}, {p[0]}, {p[1]}", f"v_add_f32 {p[2]}, {p[2]}, {p[3]}"]


PARK = YA + 24
SC_U, SC_A = 118784, 36864


def p0(B1):
    P(f"""s_cmp_ge_u32 s2, 256
    s_cbranch_scc1 L_end
    s_load_dwordx16 s[32:47], s[0:1], 0
    s_load_dwordx2 s[48:49], s[0:1], 64
    {"s_memtime s[22:23]" if OPT["stamps"] else ""}
    {"s_memrealtime s[24:25]" if OPT["stamps"] else ""}
    s_getpc_b64 s[20:21]
    L_pc:
    v_lshrrev_b32 v1, 6, v0
    v_and_b32 {vLane}, 63, v0
    v_readfirstlane_b32 {s.w}, v1
    v_lshlrev_b32 {vL16}, 4, {vLane}
    v_mov_b32 {vStamp}, 0
    s_and_b32 {s.X}, s2, 7
    s_lshr_b32 {s.j}, s2, 3
    s_and_b32 {s.cs16}, {s.j}, 15
    s_and_b32 {s.cs8}, {s.j}, 7
    s_lshr_b32 s14, {s.j}, 4
    s_lshr_b32 s15, {s.j}, 3""")
    P(lin(s.g, 0, (s.X, 2), ("s14", 1)) + lin(s.b64, 0, (s.X, 4), ("s15", 1)))
    r4, c4, u = vr(TMP + 2), vr(TMP + 3), vr(TMP + 4)
    a, b, c = vr(TMP + 5), vr(TMP + 6), vr(TMP + 7)
    Q = [vr(ACC + i) for i in range(4)]
    Z = ACC + 4
    P(lin(s.uq, 0, (s.w, 16), (s.g, 1)))
    P(f"""v_lshrrev_b32 {r4}, 2, {vLane}
    v_and_b32 {c4}, 3, {vLane}
    s_cmp_lt_u32 {s.uq}, 40
    s_cselect_b32 {s.okq}, 0, {OOB}
    s_min_u32 {s.uq}, {s.uq}, 39
    v_mul_u32_u24 {u}, 3840, {r4}
    v_lshl_add_u32 {u}, {c4}, 4, {u}
    v_add_u32 {u}, {s.okq}, {u}
    v_cmp_eq_u32 vcc, 0, {c4}
    v_add_u32 {Q[0]}, 1280, {u}
    v_add_u32 {Q[1]}, 2544, {u}
    v_add_u32 {a}, 1344, {u}
    v_cndmask_b32 {Q[1]}, {Q[1]}, {a}, vcc
    v_cmp_le_u32 vcc, 2, {c4}
    v_add_u32 {Q[2]}, 2608, {u}
    v_subrev_u32 {a}, 32, {u}
    v_cndmask_b32 {Q[2]}, {Q[2]}, {a}, vcc
    v_cmp_eq_u32 vcc, 3, {c4}
    v_add_u32 {Q[3]}, 32, {u}
    v_add_u32 {a}, 16, {u}
    v_cndmask_b32 {Q[3]}, {Q[3]}, {a}, vcc""")
    P(lin(s.ldsw, SC_U, (s.w, 9216)))
    P(lin(s.e0, 0, (s.uq, 16 * 3840), (s.cs16, 80)))
    P(row_addr(AD[3], AD[4]))
    P(lin(s.row, 0, (s.b64, 64 * 1280), (s.w, 16 * 1280), (s.cs8, 160)))
    for i in range(4):
        P(f"v_mov_b32 {vr(Z + i)}, 0")
    P(lin(s.e1, 0, (s.j, 2048), (s.w, 512)))
    P(f"""v_lshl_add_u32 {a}, {vLane}, 7, {s.e1}
    v_min_u32 {a}, L_code_end-L_pc-4, {a}
    s_waitcnt lgkmcnt(0)""")
    P(srd(WS, 48, WS_BYTES))
    P("s_cmp_lg_u32 s2, 0\ns_cbranch_scc1 L_nozero")
    P(lin(s.e1, GL, (s.w, 8192)))
    for i in range(8):
        if i == 4:
            P(f"s_add_u32 {s.e1}, {s.e1}, 4096")
        P(f"buffer_store_dwordx4 {vr(Z, 4)}, {vL16}, {WS}, {s.e1} offen offset:{1024 * (i % 4)} sc1")
    P("L_nozero:")
    P(srd(SWQ, 34, 640 * 3840))
    for t in range(4):
        wqd = P(f"s_add_u32 m0, {s.ldsw}, {1024 * t}\nbuffer_load_dwordx4 {Q[t]}, {SWQ}, {s.e0} offen lds")
    P(srd(SX, 32, 2048 * 1280))
    P(f"""buffer_load_dwordx4 {vr(RES, 4)}, {AD[3]}, {SX}, {s.row} offen
    buffer_load_dwordx4 {vr(RES + 4, 4)}, {AD[3]}, {SX}, {s.row} offen offset:64
    buffer_load_dwordx2 {vr(RES + 8, 2)}, {AD[4]}, {SX}, {s.row} offen offset:128
    s_mov_b64 exec, 15
    global_load_dword {vr(TMP + 25)}, {a}, s[20:21]
    s_mov_b64 exec, -1""")
    P(srd(DBG, 46, 256))
    P(lin(s.t0, 0, (s.j, 512), (s.w, 128)) + lin(s.ldsa, SC_A, (s.w, 20480)))
    P(f"s_add_u32 s0, s20, {s.t0}\ns_addc_u32 s1, s21, 0")
    if OPT["stamps"]:
        P(f"v_writelane_b32 {vStamp}, s22, 0\nv_writelane_b32 {vStamp}, s24, 60")
    stamp(17)
    P(f"""s_cmp_eq_u32 s2, 0
    s_cselect_b32 {s.t0}, 0, {OOB}
    v_mov_b32 {a}, {s.t0}
    v_mov_b32 {b}, 1
    s_lshl_b32 {s.t1}, {s.w}, 2
    s_waitcnt vmcnt(8)
    s_mov_b64 exec, 1
    buffer_store_dword {b}, {a}, {DBG}, {s.t1} offen sc1
    s_mov_b64 exec, -1""")
    P(lin(s.t0, 0, ("s2", 4), (s.w, 1)))
    spf = []
    for pair, ptr, n, size in ((100, 40, 17, 640 * 3456), (10, 42, 17, 1728 * 1280), (22, 36, 7, 640 * 1280)):
        P(f"""s_mul_i32 {s.t1}, {s.t0}, {128 * n}
        s_min_u32 {s.t1}, {s.t1}, {size - 128 * n}
        s_add_u32 s{pair}, s{ptr}, {s.t1}
        s_addc_u32 s{pair + 1}, s{ptr + 1}, 0""")
        spf += [f"s_load_dword {s.lt2}, s[{pair}:{pair + 1}], {128 * i}" for i in range(n)]
    if not OPT.get("spf", 1):
        spf = []
    n1, n2 = OPT.get("spf1", 8), OPT.get("spf2", 8)
    P(spf[:n1])
    tra, t3q, l16q, l8q, l4 = (vr(ACC + 8 + i) for i in range(5))
    P(f"""s_mov_b32 {s.ones}, 0x3f803f80
    v_lshrrev_b32 {a}, 5, {vLane}
    v_bfe_u32 {b}, {vLane}, 2, 2
    v_lshl_add_u32 {tra}, {a}, 3, {b}
    v_lshlrev_b32 {tra}, 6, {tra}
    v_bfe_u32 {c}, {vLane}, 4, 1
    v_lshl_add_u32 {tra}, {c}, 5, {tra}
    v_lshl_add_u32 {tra}, {c4}, 3, {tra}
    v_add_u32 {tra}, {s.ldsw}, {tra}
    v_and_b32 {c}, 31, {vLane}
    v_mul_u32_u24 {t3q}, 24, {a}
    v_add_lshl_u32 {t3q}, {t3q}, {c}, 4
    v_add_u32 {t3q}, {s.okq}, {t3q}
    v_add_u32 {l16q}, {s.okq}, {vL16}
    v_lshl_add_u32 {l8q}, {vLane}, 3, {s.okq}
    v_lshlrev_b32 {l4}, 2, {vLane}
    v_add_u32 {vL16b}, 0x10000, {vL16}
    v_add_u32 {vL16c}, 0x20000, {vL16}""")
    sa = [vr(ACC + 13), vr(ACC + 14)]
    ra = [vr(ACC + 15 + i) for i in range(4)]
    P(f"""v_lshrrev_b32 {u}, 3, {vLane}
    v_mul_u32_u24 {u}, 1280, {u}
    v_lshrrev_b32 {b}, 4, {vLane}
    v_xor_b32 {b}, {b}, {vLane}
    v_and_b32 {b}, 7, {b}
    v_lshl_add_u32 {sa[0]}, {b}, 4, {u}
    v_xor_b32 {b}, 4, {b}
    v_lshl_add_u32 {sa[1]}, {b}, 4, {u}
    v_bfe_u32 {b}, {vLane}, 1, 3
    v_xor_b32 {b}, {a}, {b}
    v_lshlrev_b32 {u}, 7, {c}
    v_add_u32 {u}, {s.ldsa}, {u}""")
    for i in range(4):
        P(f"v_xor_b32 {ra[i]}, {2 * i}, {b}\nv_lshl_add_u32 {ra[i]}, {ra[i]}, 4, {u}")
    P("s_mov_b32 s8, s44\ns_mov_b32 s9, s45\ns_mov_b32 s20, s40\ns_mov_b32 s21, s41")
    P(f"""s_add_u32 {s.t0}, {s.w}, 1
    s_and_b32 {s.t0}, {s.t0}, 3
    s_lshr_b32 {s.t1}, {s.t0}, 1
    s_xor_b32 {s.t0}, {s.t0}, {s.t1}""")
    P(lin(s.u2, 0, (s.t0, 32), (s.b64, 1)) + lin(s.uf, 48, (s.g, 1), (s.w, -16)))
    P(f"""s_cmp_lt_u32 {s.uf}, 40
    s_cselect_b32 {s.okf}, 0, {OOB}
    s_min_u32 {s.uf}, {s.uf}, 39
    s_cmp_lt_u32 {s.u2}, 76
    s_cselect_b32 {s.ok2}, 0, {OOB}
    s_min_u32 {s.u2}, {s.u2}, 75
    s_cmp_lt_u32 {s.u2}, 56
    s_cselect_b32 s24, s42, s36
    s_cselect_b32 s25, s43, s37
    s_mov_b32 s26, {640 * 1280}
    s_cselect_b32 s26, {1728 * 1280}, s26
    s_mov_b32 s27, 0x20000
    s_mov_b32 s48, 0
    s_mov_b32 s49, -1
    s_mov_b32 {s.ninf}, 0xff800000""")
    blk, wh, wl, cq, cr, kl, lf, bl = s.t2, s.t3, s.t4, s.t5, s.t6, s.t7, s.t8, s.t9
    P(lin(blk, 0, (s.g, 4), (s.w, 1)))
    P(f"""s_lshr_b32 {wh}, {s.w}, 1
    s_and_b32 {wl}, {s.w}, 1
    s_lshr_b32 {cq}, {s.cs16}, 2
    s_and_b32 {cr}, {s.cs16}, 3
    s_and_b32 {bl}, {s.b64}, 1
    s_lshl_b32 {s.w4k}, {s.w}, 12""")
    P(lin(s.wq, WQ, (s.cs16, WQ_SL)) + lin(s.csb, CS, (s.cs16, 20480)))
    P(lin(kl, KL, (s.cs16, 2048), (s.g, 128)) + lin(lf, LF, (s.g, 2048)) + lin(s.t0, 0, (s.cs16, 128), (lf, 1)))
    P(f"s_cmp_eq_u32 {s.w}, 0\ns_cselect_b32 {s.zl}, {kl}, {s.t0}")
    P(lin(s.gl, GL, ("s2", 128)) + lin(s.xraw, 0, (blk, 32 * 1280)))
    P(lin(s.xld, XB, (blk, 40960)) + lin(s.stl, ST, (s.g, 8192), (wh, 4096), (wl, 256)))
    P(lin(s.xst, XB, (s.b64, 81920), (wh, 40960), (s.cs8, 5120), (wl, 256)))
    P(lin(s.stw, ST, (s.b64, 4096), (s.cs8, 512), (s.w, 128)))
    P(lin(s.t0, OB, (blk, 40960), (cq, 5120)) + lin(s.o1, 0, (cr, 1024), (s.t0, 1)) + lin(s.o2, 4096, (cr, 256), (s.t0, 1)))
    P(lin(s.t0, HB, (blk, 114688), (cq, 14336)) + lin(s.h1, 0, (cr, 3072), (s.t0, 1)) + lin(s.h2, 12288, (cr, 512), (s.t0, 1)))
    P(lin(s.oal, OB, (s.b64, 81920), (s.w, 5120)) + lin(s.hal, HB, (s.b64, 229376), (s.w, 14336)))
    P(lin(s.w1, W1, (s.cs16, W1_SL)) + lin(s.wo, WO, (s.cs8, 4 * WO_SL), (s.w, WO_SL)) + lin(s.w2, W2, (s.cs8, 4 * W2_SL), (s.w, W2_SL)))
    P(lin(s.kvw, 0, (s.w, KV_T)) + lin(s.t0, KV, (s.cs16, 64 * KV_T), (s.g, 4 * KV_T)) + lin(s.kst, 0, (s.t0, 1), (s.kvw, 1)))
    P(f"s_mul_i32 {s.hw}, {s.w}, 3072\ns_min_u32 {s.hw}, {s.hw}, 8192")
    P(lin(s.kld, -8 * KV_T, (s.t0, 1), (s.hw, 1)) + lin(s.fkw, 0, (s.w, 4), (kl, 1)) + lin(s.fkr, -256, (kl, 1)))
    P(lin(s.fxw, 0, (bl, 256), (wh, 128), (s.cs8, 8), (wl, 4), (lf, 1)) + lin(s.fxr, 0, (s.w, 128), (lf, 1)))
    P(lin(s.fo_r, 512, (bl, 512), (s.fxr, 1)) + lin(s.fow, 512, (wh, 512), (cq, 128), (cr, 8), (wl, 4), (lf, 1)))
    P(lin(s.t0, 0, (s.uq, 2048), (s.wq, 1)) + lin(s.t1, 122880, (s.uq, 768), (s.wq, 1)) + lin(s.t2, 0, (s.uq, 512), (s.csb, 1)))
    P(lin(s.t3, 81920, (s.uq, 1024), (s.wq, 1)))
    FR = ACC + 32
    P(spf[n1:n1 + n2])
    P(wait_vm(wqd))
    stamp(1)
    for t in range(4):
        for h in range(2):
            P(f"ds_read_b64_tr_b16 {vr(FR + 4 * t + 2 * h, 2)}, {tra} offset:{1024 * t + 256 * h}")
    for t in range(3):
        P(f"buffer_store_dwordx4 {vr(FR + 4 * t, 4)}, {l16q}, {WS}, {s.t0 if t < 2 else s.t3} offen offset:{1024 * (t & 1)} sc1")
    P(f"""s_mov_b32 exec_lo, 0xffffff
    s_mov_b32 exec_hi, 0xffffff
    buffer_store_dwordx4 {vr(FR + 12, 4)}, {t3q}, {WS}, {s.t1} offen sc1
    s_mov_b64 exec, 0xff
    s_cmp_ge_u32 {s.w}, 2
    s_cbranch_scc1 L_nozl
    buffer_store_dwordx4 {vr(Z, 4)}, {vL16}, {WS}, {s.zl} offen sc1
    L_nozl:
    s_mov_b64 exec, -1""")
    P(colsum_partial(FR, TMP + 8))
    P(f"""buffer_store_dwordx2 {vr(TMP + 8, 2)}, {l8q}, {WS}, {s.t2} offen sc1
    v_and_b32 {l4}, 12, {l4}
    buffer_load_dword {vr(TMP + 16)}, {l4}, {DBG}, 0 offen sc1""")

    def stage(bk):
        last = None
        for i in range(4):
            last = P(f"""s_add_u32 m0, {s.ldsa}, {4096 * (bk % 5) + 1024 * i}
            s_add_u32 {s.oA}, {s.xraw}, {8 * 1280 * i + 128 * bk}
            buffer_load_dwordx4 {sa[i & 1]}, {SX}, {s.oA} offen lds""")
        return last

    n3 = n1 + n2 + OPT.get("spf3", 12)
    P(spf[n1 + n2:n3])
    land = [stage(bk) for bk in range(OPT.get("st0", 5))]
    P(f"""s_getreg_b32 {s.xcc}, hwreg(HW_REG_XCC_ID)
    s_and_b32 {s.xcc}, {s.xcc}, 15
    s_add_u32 {s.xcc}, {s.xcc}, 1
    v_mov_b32 {vr(FLAGV)}, {s.xcc}""")
    P(lin(s.t0, 0, (s.w, 4), (s.gl, 1)))
    P(f"""v_cmp_gt_u32 vcc, 1, {vr(TMP + 16)}
    s_cbranch_vccnz L_boot
    L_booted:""")
    slow_poll("L_boot", l4, DBG, vr(TMP + 16))
    P(flag_store(s.t0, True))
    stamp(20)
    land += [stage(bk) for bk in range(len(land), 5)]
    P(spf[n3:])
    P(f"s_mov_b32 s10, {2048 * 1280}\ns_mov_b32 s11, 0x20000\ns_mov_b32 s22, {640 * 3456}\ns_mov_b32 s23, 0x20000")
    F = [vr(ACC + 19), vr(ACC + 20)]
    tb1, tb2, w2v = vr(ACC + 21), vr(ACC + 22), vr(ACC + 23)
    P(f"""v_mul_u32_u24 {u}, 3456, {r4}
    v_add_u32 {u}, {s.okf}, {u}""")
    P(lin(s.t0, 0, (s.uf, 16 * 3456), (s.cs16, 216)))
    P(f"""v_add_u32 {u}, {s.t0}, {u}
    v_lshl_add_u32 {F[0]}, {c4}, 4, {u}
    v_min_u32 {a}, 1, {c4}
    v_lshl_add_u32 {F[1]}, {a}, 4, {u}
    v_add_u32 {F[1]}, 192, {F[1]}
    v_bfe_u32 {b}, {vLane}, 2, 2
    v_lshrrev_b32 {a}, 4, {vLane}
    v_lshl_add_u32 {a}, {a}, 3, {b}
    v_lshlrev_b32 {a}, 5, {a}
    v_add_u32 {a}, {s.ldsw}, {a}
    v_lshl_add_u32 {tb2}, {c4}, 3, {a}
    v_lshrrev_b32 {b}, 1, {c4}
    v_lshl_add_u32 {tb1}, {b}, 10, {a}
    v_and_b32 {b}, 1, {c4}
    v_lshl_add_u32 {tb1}, {b}, 4, {tb1}""")
    uq_, kk, base, cA, cB, cC, inv, dst = s.t0, s.t1, s.t2, s.t3, s.t4, s.t5, s.t6, s.w2d
    P(f"""s_cmp_lt_u32 {s.u2}, 56
    s_cbranch_scc0 L_unit_wo
    s_mul_i32 {uq_}, {s.u2}, 4682
    s_lshr_b32 {uq_}, {uq_}, 16""")
    P(lin(kk, 0, (uq_, -14), (s.u2, 1)) + lin(dst, W2, (s.cs8, 56 * 5120), (s.u2, 5120)))
    P(f"""s_mov_b32 {cB}, 4
    s_mov_b32 {cC}, 8
    s_cmp_lt_u32 {kk}, 12
    s_cbranch_scc0 L_unit_w2l
    s_mul_i32 {s.t7}, {kk}, 21846
    s_lshr_b32 {s.t7}, {s.t7}, 16""")
    P(lin(base, 0, (uq_, 432), (s.t7, 12), (kk, 32)))
    P(f"""s_mov_b32 {cA}, 16
    s_mov_b32 {inv}, 0
    s_branch L_unit_done
    L_unit_w2l:""")
    P(lin(base, 96 - 12 * 216, (uq_, 432), (kk, 216)))
    P(f"""s_mov_b32 {cA}, 108
    s_mov_b32 {inv}, {OOB}
    s_branch L_unit_done
    L_unit_wo:
    s_sub_u32 {s.t7}, {s.u2}, 56
    s_mul_i32 {uq_}, {s.t7}, 13108
    s_lshr_b32 {uq_}, {uq_}, 16""")
    P(lin(kk, 0, (uq_, -5), (s.t7, 1)) + lin(dst, WO, (s.cs8, 20 * 5120), (s.t7, 5120)))
    P(f"""s_mul_i32 {base}, {uq_}, 160
    s_mul_i32 {s.t8}, {kk}, 40
    s_mov_b32 {inv}, 0
    s_cmp_lt_u32 {kk}, 4
    s_cselect_b32 {s.t8}, {s.t8}, 16
    s_cselect_b32 {cA}, 24, 80
    s_cselect_b32 {cB}, 4, 40
    s_cselect_b32 {cC}, 8, 4
    s_add_u32 {base}, {base}, {s.t8}
    L_unit_done:
    v_bfe_u32 {a}, {vLane}, 1, 2
    v_add_u32 {w2v}, {base}, {a}
    v_lshrrev_b32 {a}, 5, {vLane}
    v_mad_u32_u24 {w2v}, {a}, {cA}, {w2v}
    v_bfe_u32 {a}, {vLane}, 4, 1
    v_mad_u32_u24 {w2v}, {a}, {cB}, {w2v}
    v_bfe_u32 {b}, {vLane}, 3, 1
    v_mad_u32_u24 {w2v}, {b}, {cC}, {w2v}
    v_mul_u32_u24 {w2v}, 1280, {w2v}
    v_and_b32 {a}, {a}, {b}
    v_mul_lo_u32 {a}, {a}, {inv}
    v_or_b32 {a}, {s.ok2}, {a}
    v_add_u32 {w2v}, {w2v}, {a}
    v_and_b32 {a}, 1, {vLane}
    v_lshl_add_u32 {w2v}, {a}, 4, {w2v}
    s_mul_i32 {s.t0}, {s.cs8}, 160""")

    def rest_loads():
        for t in range(4):
            P(f"""s_add_u32 m0, {s.ldsw}, {1024 * t}
            s_mov_b32 {s.t1}, {64 * t if t < 3 else 0}
            buffer_load_dwordx4 {F[t // 3]}, {SW1}, {s.t1} offen lds""")
        for i in range(5):
            last = P(f"""s_add_u32 m0, {s.ldsw}, {4096 + 1024 * i}
            s_add_u32 {s.t1}, {s.t0}, {32 * i}
            buffer_load_dwordx4 {w2v}, {SW2}, {s.t1} offen lds""")
        return last

    DUP = ACC + 32
    sq = [vr(TMP + 8 + i) for i in range(4)]

    def unstage(bk):
        for i in range(4):
            k = 4 * bk + i
            rd = P(f"ds_read_b128 {xfrag(k)}, {ra[i]} offset:{4096 * (bk % 5)}")
            if k < 5:
                rd = P(f"ds_read_b128 {vr(DUP + 4 * k, 4)}, {ra[i]} offset:{4096 * (bk % 5)}")
        return rd

    def sums(k):
        r0 = DUP + 4 * k if k < 5 else XV + 4 * (k - 5)
        for e in range(4):
            z = k == 0 and e < 2
            x, y = sq[2 * (e & 1)], sq[2 * (e & 1) + 1]
            P(f"v_dot2_f32_bf16 {x}, {vr(r0 + e)}, {s.ones}, {0 if z else x}")
            P(f"v_dot2_f32_bf16 {y}, {vr(r0 + e)}, {vr(r0 + e)}, {0 if z else y}")

    rds = []
    for bk in range(5):
        P(wait_vm(land[bk]))
        rds.append(unstage(bk))
    for bk in range(5):
        P(wait_lg(rds[bk]))
        stage(bk + 5)
    rest_loads()
    for k in range(20):
        sums(k)
    t3f, l8 = vr(ACC + 24), vr(ACC + 25)
    P(lin(s.wq4, 0, (s.wq, 1), (s.w4k, 1)) + lin(s.w14, 0, (s.w1, 1), (s.w4k, 1)))
    P(f"""v_lshrrev_b32 {a}, 5, {vLane}
    v_and_b32 {b}, 15, {vLane}
    v_lshl_add_u32 {t3f}, {a}, 4, {b}
    v_lshlrev_b32 {t3f}, 4, {t3f}
    v_lshlrev_b32 {l8}, 3, {vLane}
    v_bfe_u32 {a}, {vLane}, 2, 1
    v_lshlrev_b32 {a}, 7, {a}
    v_lshrrev_b32 {b}, 3, {vLane}
    s_lshl_b32 {s.t1}, {s.cs16}, 3
    v_add3_u32 {a}, {a}, {b}, {s.t1}
    v_lshl_add_u32 {a}, {a}, 7, {l4}
    s_mov_b32 {s.t1}, {GL}
    s_mov_b32 s12, s4
    s_mov_b32 s13, s5
    s_cmp_eq_u32 {s.okf}, 0
    s_cselect_b32 s14, {WS_BYTES}, 0
    s_mov_b32 s16, s4
    s_mov_b32 s17, s5
    s_cmp_eq_u32 {s.ok2}, 0
    s_cselect_b32 s18, {WS_BYTES}, 0""")
    stamp(21)
    poll(a, s.t1, 1, b)
    stamp(22)
    grp = [B1.take(4), B1.take(4)]
    P(flat(grp[0]) + flat(grp[1]))
    for t in range(4):
        for h in range(2):
            P(f"ds_read_b64_tr_b16 {vr(RF + 4 * t + 2 * h, 2)}, {tra} offset:{1024 * t + 256 * h}")
    for t in range(5):
        for h in range(2):
            ad, off = (tb1, 2048 * (t >> 1) + 8 * (t & 1)) if t < 4 else (tb2, 4096)
            P(f"ds_read_b64_tr_b16 {ar(PARK + 16 + 4 * t + 2 * h, 2)}, {ad} offset:{4096 + off + 128 * h}")
    for bk in range(5, 10):
        unstage(bk)
    P(colsum_partial(RF, ACC + 48))
    rs = rest_stores(t3f, l8)
    for k in range(20, 40):
        if k % 2 == 0:
            P(rs[(k - 20) // 2])
        sums(k)
    P(f"v_add_f32 {vr(TMP)}, {sq[0]}, {sq[2]}\nv_add_f32 {vr(TMP + 1)}, {sq[1]}, {sq[3]}")
    P(stats_calc(False)[6:])
    return grp, rs[-1][-1]


RF = ACC + 32


def rest_stores(t3f, l8):
    o = [lin(s.t4, 0, (s.uf, 2048), (s.w1, 1)) + [f"buffer_store_dwordx4 {vr(RF, 4)}, {vL16}, {SX}, {s.t4} offen sc1"],
         [f"buffer_store_dwordx4 {vr(RF + 4, 4)}, {vL16}, {SX}, {s.t4} offen offset:1024 sc1"],
         lin(s.t4, 81920, (s.uf, 1024), (s.w1, 1)) + [f"buffer_store_dwordx4 {vr(RF + 8, 4)}, {vL16}, {SX}, {s.t4} offen sc1"],
         lin(s.t4, 122880, (s.uf, 512), (s.w1, 1)) + ["s_mov_b32 exec_lo, 0xffff", "s_mov_b32 exec_hi, 0xffff",
                                                     f"buffer_store_dwordx4 {vr(RF + 12, 4)}, {t3f}, {SX}, {s.t4} offen sc1",
                                                     "s_mov_b64 exec, -1"],
         lin(s.t4, 16 * 20480, (s.uf, 512), (s.csb, 1)) + [f"buffer_store_dwordx2 {vr(ACC + 48, 2)}, {l8}, {SX}, {s.t4} offen sc1"]]
    o += [[f"buffer_store_dwordx4 {ar(PARK + 16 + 4 * t, 4)}, {vL16}, {SWQ}, {s.w2d} offen offset:{1024 * t} sc1"] for t in range(4)]
    o += [[f"s_add_u32 {s.t4}, {s.w2d}, 4096", f"buffer_store_dwordx4 {ar(PARK + 32, 4)}, {vL16}, {SWQ}, {s.t4} offen sc1"]]
    return [[I(x) for x in g] for g in o]


RSTD, CA, CB, MF = TMP + 12, TMP + 13, TMP + 14, TMP + 16


def stats_loads():
    ad = AD[10]
    pre = [f"v_and_b32 {vr(TMP)}, 31, {vLane}", f"v_lshrrev_b32 {ad}, 5, {vLane}",
           f"v_lshlrev_b32 {ad}, 11, {ad}", f"v_lshl_add_u32 {ad}, {vr(TMP)}, 3, {ad}"]
    ld = [[I(f"buffer_load_dwordx2 {vr(TMP + 2 * i, 2)}, {ad}, {WS}, {s.stl} offen offset:{512 * i} sc1")] for i in range(4)]
    return pre, ld


def stats_calc(ffn):
    t = [vr(TMP + i) for i in range(8)]
    o = [f"v_add_f32 {t[0]}, {t[0]}, {t[2]}", f"v_add_f32 {t[1]}, {t[1]}, {t[3]}",
         f"v_add_f32 {t[4]}, {t[4]}, {t[6]}", f"v_add_f32 {t[5]}, {t[5]}, {t[7]}",
         f"v_add_f32 {t[0]}, {t[0]}, {t[4]}", f"v_add_f32 {t[1]}, {t[1]}, {t[5]}",
         f"v_mov_b32 {t[2]}, {t[0]}", f"v_mov_b32 {t[3]}, {t[1]}",
         f"v_mov_b32 {vr(MF + 1)}, 0", f"v_mov_b32 {vr(MF + 2)}, 0",
         f"v_permlane32_swap_b32 {t[0]}, {t[2]}", f"v_permlane32_swap_b32 {t[1]}, {t[3]}",
         f"v_add_f32 {t[0]}, {t[0]}, {t[2]}", f"v_add_f32 {t[1]}, {t[1]}, {t[3]}",
         f"v_mul_f32 {t[0]}, {f32(-1 / 640)}, {t[0]}", f"v_mul_f32 {t[1]}, {f32(1 / 640)}, {t[1]}",
         f"v_fma_f32 {t[1]}, -{t[0]}, {t[0]}, {t[1]}", f"v_max_f32 {t[1]}, 0, {t[1]}",
         f"v_add_f32 {t[1]}, {f32(1e-5)}, {t[1]}", f"v_rsq_f32 {vr(RSTD)}, {t[1]}",
         f"v_cvt_pk_bf16_f32 {t[2]}, {t[0]}, {t[0]}", f"v_and_b32 {t[3]}, 0xffff0000, {t[2]}",
         f"v_sub_f32 {t[3]}, {t[0]}, {t[3]}", f"v_cvt_pk_bf16_f32 {t[3]}, {t[3]}, {t[3]}",
         f"v_cndmask_b32 {vr(MF)}, {t[2]}, {t[3]}, {HALF}", f"v_mov_b32 {vr(MF + 3)}, {vr(MF)}"]
    if ffn:
        o += [f"v_mul_f32 {vr(CA)}, {f32(-math.log2(math.e))}, {vr(RSTD)}", f"v_mul_f32 {vr(CB)}, {t[1]}, {vr(RSTD)}"]
    else:
        o += [f"v_mul_f32 {vr(CA)}, {f32(math.log2(math.e) / math.sqrt(20))}, {vr(RSTD)}"]
    return o


def corr(t, acc, which):
    return mf8(acc, ar(CSA + 4 * which + 2 * (t >> 1), 2), vr(MF + 2 * (t & 1), 2), acc)


def colsum_loads(which, park):
    out = []
    for i in range(10):
        g = [I(x) for x in lin(s.t8, which * 16 * 20480 + 512 * i, (s.w, 5120), (s.csb, 1))] if i % 8 == 0 else []
        out.append(g + [I(f"buffer_load_dwordx2 {ar(park + 2 * i, 2)}, {AD[9]}, {WS}, {s.t8} offen offset:{512 * (i % 8)} sc1")])
    return out


def colsum_put(d, park, lds):
    o = [f"v_accvgpr_read_b32 {vr(d)}, {ar(park)}", f"v_accvgpr_read_b32 {vr(d + 1)}, {ar(park + 1)}"]
    for i in range(1, 10):
        o += [f"v_accvgpr_read_b32 {vr(d + 2)}, {ar(park + 2 * i)}", f"v_accvgpr_read_b32 {vr(d + 3)}, {ar(park + 2 * i + 1)}",
              f"v_add_f32 {vr(d)}, {vr(d)}, {vr(d + 2)}", f"v_add_f32 {vr(d + 1)}, {vr(d + 1)}, {vr(d + 3)}"]
    o += lin(s.t8, lds, (s.w, 512))
    o += [f"v_add_u32 {vr(d + 2)}, {s.t8}, {AD[9]}", f"ds_write_b64 {vr(d + 2)}, {vr(d, 2)}"]
    return o


def colsum_get(d, which, lds, ad):
    o = [f"v_and_b32 {ad}, 0xff, {AD[9]}", f"v_add_u32 {ad}, {lds}, {ad}"]
    o += [f"ds_read_b64 {vr(d + 2 * i, 2)}, {ad} offset:{256 * i}" for i in range(8)]
    for i in (1, 2, 3):
        o += [f"v_add_f32 {vr(d + e)}, {vr(d + e)}, {vr(d + 4 * i + e)}" for e in range(4)]
    for t, e in enumerate((0, 2, 1, 3)):
        c, h = vr(d + e), vr(d + 4 + e)
        o += [f"v_cvt_pk_bf16_f32 {h}, {c}, {c}", f"v_and_b32 {h}, 0xffff0000, {h}", f"v_sub_f32 {c}, {c}, {h}",
              f"v_cvt_pk_bf16_f32 {c}, {h}, {c}", f"v_accvgpr_write_b32 {ar(CSA + 4 * which + t)}, {c}"]
    return o


def lds_rd(dst, addr):
    base = (vL16, vL16b, vL16c)[addr >> 16]
    return f"ds_read_b128 {dst}, {base} offset:{addr & 0xffff}"


def ring_reads(B, reads):
    ins = [I(f(ar(WB + 4 * (i % 6), 4))) for i, (_, f) in enumerate(reads)]
    for i, (b, _) in enumerate(reads):
        if i % 2 == 0 and i + 1 < len(reads):
            B.at(b, wait_lg(ins[min(i + 2, len(reads) - 1)]))
        if i + 6 < len(reads):
            B.at(b, ins[i + 6])
    return ins[:6]


class Gemm4:
    def __init__(self, a01, a2, a3, t3a, t3s, which, stag):
        acc = [vr(ACC + 16 * t, 16) for t in range(4)]
        ms, reads, self.addr, self.first_use, self.last_use = [], [], [], {}, {}

        def step(t, k):
            a = (a01 + 2048 * k + 1024 * t) if t < 2 else (a2 + 1024 * k) if t == 2 else a3 + t3s * k
            f = (lambda d: lds_rd(d, a)) if t < 3 else (lambda d: f"ds_read_b128 {d}, {t3a} offset:{t3s * k}")
            reads.append((len(ms), f))
            self.addr.append((a, a + (1024 if t < 3 else t3s)))
            self.first_use.setdefault(k, len(ms))
            self.last_use[k] = len(ms)
            ms.append(mf32(acc[t], ar(WB + 4 * ((len(reads) - 1) % 6), 4), xfrag(k), acc[t] if k else 0))

        k2 = 0
        for k in range(40):
            step(0, k)
            step(1, k)
            if (k + 1) * stag // 40 > k2:
                step(2, k2)
                k2 += 1
        ms += [corr(t, acc[t], which) for t in range(2)]
        self.pb2 = len(ms)
        for k in range(k2, 40):
            step(2, k)
        ms.append(corr(2, acc[2], which))
        self.pb3 = len(ms)
        for k in range(40):
            step(3, k)
        ms.append(corr(3, acc[3], which))
        self.B = Beats(ms)
        self.first = ring_reads(self.B, reads)
        self.reads = reads

    def deadline(self, lo, hi):
        i = min(i for i, (a, b) in enumerate(self.addr) if a < hi and b > lo)
        assert i >= 7
        return self.reads[i - 6][0] - 1

    def a_loads(self, A, extra, at, rate):
        for k in range(1, 40):
            self.B.at(self.first_use[k] - 1, wait_vm(A[k][-1]))
        items = A[8:at] + extra + A[at:]
        for i, g in enumerate(items):
            if g in A:
                assert int(i * rate) < self.first_use[A.index(g)] - 4
        return self.B.every(items, 0, rate)


def code_touch(lab):
    if OPT.get("ct", 1):
        P(f"s_mov_b32 {s.lt}, {lab}-L_pc\ns_load_dword {s.lt2}, s[0:1], {s.lt}")


QA, QSA, QSB, QB = TMP, TMP + 4, TMP + 6, TMP + 8
vKa, vKs, vDm = AD[0], AD[1], AD[2]
vT = [[AD[3], AD[4]], [AD[5], AD[6]]]


H1, H2, PA = TMP + 14, TMP + 15, TMP + 23
PB, MK = XV, XV + 8


def p1(B1, boot, late):
    P(f"L_p1_{LAYER}:")
    t3a, gV, gV2, lV, lV2 = AD[8], AD[4], AD[5], AD[6], AD[7]
    tok, hf, u = vr(TMP + 20), vr(TMP + 21), vr(TMP + 22)
    P(lane_parts32(tok, hf))
    P(f"""v_min_u32 {u}, 23, {tok}
    v_mad_u32_u24 {t3a}, {hf}, 24, {u}
    v_lshlrev_b32 {t3a}, 4, {t3a}
    v_add_u32 {t3a}, 122880, {t3a}
    v_lshlrev_b32 {AD[9]}, 3, {vLane}
    v_add_u32 {vKa}, {s.kvw}, {vL16}
    v_add_u32 {vKs}, {s.kvw}, {AD[9]}
    v_lshlrev_b32 {vDm}, 2, {hf}
    v_xor_b32 {gV}, {vLane}, {vDm}
    v_lshlrev_b32 {gV}, 4, {gV}
    v_add_u32 {lV}, {s.kvw}, {gV}
    v_xor_b32 {gV2}, 8, {tok}
    v_lshlrev_b32 {gV2}, 4, {gV2}
    v_mul_u32_u24 {u}, 1536, {hf}
    v_add_u32 {gV2}, {gV2}, {u}
    v_add_u32 {lV2}, {s.kvw}, {gV2}
    v_sub_u32 {vDm}, {tok}, {vDm}""")
    G = Gemm4(0, 81920, 122880, t3a, 768, 0, OPT.get("stag1", 10) if LAYER else 0)
    B, pb2, pb3 = G.B, G.pb2, G.pb3
    if LAYER == 0:
        grp, rest = boot
        ca, cv = AD[10], AD[3]
        P(f"""v_and_b32 {ca}, 3, {vLane}
        v_lshlrev_b32 {ca}, 6, {ca}
        v_bfe_u32 {u}, {vLane}, 2, 3
        s_lshl_b32 {s.t0}, {s.cs8}, 3
        v_add3_u32 {ca}, {ca}, {u}, {s.t0}
        v_lshl_add_u32 {ca}, {ca}, 7, 16
        v_and_b32 {u}, 15, {vLane}
        s_and_b32 {s.t0}, s2, 0x87
        v_lshl_add_u32 {u}, {u}, 3, {s.t0}
        v_lshl_add_u32 {u}, {u}, 7, 4
        v_cndmask_b32 {ca}, {ca}, {u}, {HALF}
        v_add_u32 {ca}, {GL}, {ca}
        v_mov_b32 {vr(FLAGV)}, 1""")
        P(wait_vm(grp[0][-1][-1]))
        P("s_waitcnt lgkmcnt(0)\ns_barrier")
        stamp(3)
        grp += [B1.take(4) for _ in range(7)] + [B1.take(2)]
        P(flat(grp[2]))
        cld = colsum_loads(0, YA)
        dl = [0] + [G.deadline(16384 * n, 16384 * (n + 1)) for n in range(1, 10)]
        chk = I(f"buffer_load_dword {cv}, {ca}, {WS}, 0 offen sc1")
        extra = {3: cld[:5], 4: cld[5:], 9: [[chk]]}
        for n in range(1, 10):
            B.at(dl[n], wait_vm(grp[n][-1][-1]))
            B.at(dl[n], "s_barrier")
            if n + 2 < 10:
                e = B.every(grp[n + 2] + extra.get(n + 2, []), dl[n - 1] + 1, 1.6 if n > 1 else 0.9)
        B.at(dl[2] + 1, [I(f"s_cmp_eq_u32 {s.w}, 0"), I("s_cselect_b64 exec, 1, 0"),
                         I(f"buffer_store_dword {vr(FLAGV)}, {vLane}, {WS}, {s.gl} offen offset:16 sc1"), I("s_mov_b64 exec, -1")])
        d = ACC + 48
        put = [I(x) for x in colsum_put(d, YA, 157696)]
        B.spread(put[:-1], dl[3] + 1, dl[4] - 2)
        B.at(dl[4] - 1, put[-1])
        B.f[dl[4]].insert(0, wait_lg(put[-1]))
        B.spread(colsum_get(d, 0, 157696, vr(TMP + 20)), dl[4] + 1, pb2 - 4)
        cb = OPT.get("cb", dl[7] + 6)
        B.at(cb, [I(f"v_cmp_gt_u32 vcc, 1, {cv}"), I("s_cbranch_vccnz L_rest"), I("L_rested:"),
                  I(f"v_cmp_ne_u32 vcc, {s.xcc}, {cv}"), I(f"s_mov_b32 {s.slow}, {1 if OPT['force_slow'] else 'vcc_hi'}")])
        slow_poll("L_rest", ca, WS, cv)
        B.every(late, cb + 1, OPT.get("br1", 2.6))
        free = dl[6]
    else:
        pre, sld = stats_loads()
        P(pre)
        P(f"v_lshlrev_b32 {u}, 2, {vLane}\nv_and_b32 {u}, 63, {u}")
        poll(u, s.fxr, 2, tok)
        stamp(3)
        A = RegStream([xfrag(k) for k in range(40)], s.xld, s.oA, weight=False).take()
        P(flat(A[:8]))
        P("s_barrier")
        e = G.a_loads(A, sld, 24, OPT.get("ar1", 2.0))
        lo = 16384 * (B1.i // 4)
        B.every(B1.take(), e, 2)
        B.spread(stats_calc(False), e - 8, pb2 - 4)
        free = G.deadline(lo, 163840)
        B.at(free, wait_vm(B1.last))
        B.at(free, "s_barrier")
    assert free >= pb2
    P(G.first)
    g = lambda gs, r: vr(ACC + 4 * gs + r)

    def pack(gs, dst, scale):
        o = [f"v_mul_f32 {g(gs, r)}, {vr(scale)}, {g(gs, r)}" for r in range(4)]
        return o + [f"v_cvt_pk_bf16_f32 {vr(dst + i)}, {g(gs, 2 * i)}, {g(gs, 2 * i + 1)}" for i in range(2)]

    KA_, KS_, KB_ = ACC, ACC + 4, ACC + 8
    VA_, V2_, VB_ = ACC + 20, ACC + 24, ACC + 28
    own = 8 * KV_T
    base = KV_L * LAYER
    ep = [f"s_add_u32 {s.t2}, {s.kst}, {base + 2560}", f"s_add_u32 {s.t3}, {s.kst}, {base}"]
    ep += pack(0, KA_, RSTD) + pack(1, KA_ + 2, RSTD) + [f"buffer_store_dwordx4 {vr(KA_, 4)}, {vL16}, {WS}, {s.t3} offen sc1"]
    ep += pack(2, KS_, RSTD) + [f"buffer_store_dwordx2 {vr(KS_, 2)}, {AD[9]}, {WS}, {s.t3} offen offset:2048 sc1"]
    ep += pack(3, KB_, RSTD) + pack(4, KB_ + 2, RSTD)
    ep += [f"buffer_store_dwordx4 {vr(KB_, 4)}, {vL16}, {WS}, {s.t3} offen offset:1024 sc1"]
    ep += pack(5, VA_, RSTD) + pack(6, VA_ + 2, RSTD) + pack(7, V2_, RSTD)
    ep += [f"v_permlane32_swap_b32 {vr(VA_)}, {vr(VA_ + 2)}", f"v_permlane32_swap_b32 {vr(VA_ + 1)}, {vr(VA_ + 3)}",
           f"buffer_store_dwordx4 {vr(VA_, 4)}, {gV}, {WS}, {s.t2} offen sc1",
           f"v_mov_b32 {vr(V2_ + 2)}, {s.ones}", f"v_mov_b32 {vr(V2_ + 3)}, {s.ones}", "|", "|",
           f"buffer_store_dwordx4 {vr(V2_, 4)}, {gV2}, {WS}, {s.t2} offen offset:1024 sc1"]
    e = B.spread(ep, pb2 + 2)
    lastst = I(f"buffer_store_dwordx4 {vr(VB_, 4)}, {gV}, {WS}, {s.t2} offen offset:1536 sc1")
    ep = pack(8, VB_, RSTD) + pack(9, VB_ + 2, RSTD) + pack(10, QA, CA)[:2]
    ep += [f"v_permlane32_swap_b32 {vr(VB_)}, {vr(VB_ + 2)}", f"v_permlane32_swap_b32 {vr(VB_ + 1)}, {vr(VB_ + 3)}", lastst]
    ep += pack(10, QA, CA)[2:] + pack(11, QA + 2, CA) + [f"v_mov_b32 {vr(FLAGV)}, {LAYER + 1}"]
    e = B.spread(ep, max(e + 1, pb3 + 3))
    wr = [f"ds_write_b128 {vKa}, {vr(KA_, 4)} offset:{own}", f"ds_write_b64 {vKs}, {vr(KS_, 2)} offset:{own + 2048}",
          f"ds_write_b128 {lV}, {vr(VA_, 4)} offset:{own + 2560}", f"ds_write_b128 {lV2}, {vr(V2_, 4)} offset:{own + 3584}",
          f"ds_write_b128 {vKa}, {vr(KB_, 4)} offset:{own + 1024}", f"ds_write_b128 {lV}, {vr(VB_, 4)} offset:{own + 4096}"]
    mask = []
    for r in range(16):
        mask += [f"v_subrev_u32 {vr(MK + r)}, {8 * (r >> 2) + (r & 3)}, {vDm}", f"v_and_b32 {vr(MK + r)}, {s.ninf}, {vr(MK + r)}"]
    ep = []
    for i, x in enumerate(wr):
        ep += [x] + mask[5 * i: 5 * i + 5]
    ep += mask[30:]
    ep += f"""v_and_b32 {tok}, 3, {vLane}
    v_bfe_u32 {hf}, {vLane}, 4, 1
    v_cmp_ne_u32 vcc, 0, {hf}
    v_lshrrev_b32 {u}, 1, {tok}
    v_bfe_u32 {hf}, {vLane}, 2, 2
    v_cndmask_b32 {u}, {u}, 2, vcc
    v_lshrrev_b32 {vT[0][0]}, 5, {vLane}
    v_lshl_add_u32 {hf}, {vT[0][0]}, 2, {hf}
    v_lshlrev_b32 {vT[0][0]}, 2, {u}
    v_xor_b32 {hf}, {hf}, {vT[0][0]}
    v_lshlrev_b32 {hf}, 4, {hf}
    v_lshl_add_u32 {hf}, {u}, 9, {hf}
    v_and_b32 {u}, 1, {tok}
    v_min_u32 {vT[0][0]}, 1, {tok}
    v_cndmask_b32 {vT[0][0]}, {u}, {vT[0][0]}, vcc
    v_xor_b32 {vT[1][0]}, 1, {tok}
    v_min_u32 {vT[1][0]}, 1, {vT[1][0]}
    v_cndmask_b32 {vT[1][0]}, {u}, {vT[1][0]}, vcc
    v_lshl_add_u32 {vT[0][0]}, {vT[0][0]}, 3, {hf}
    v_lshl_add_u32 {vT[1][0]}, {vT[1][0]}, 3, {hf}
    v_xor_b32 {vT[0][1]}, 0x80, {vT[0][0]}
    v_xor_b32 {vT[1][1]}, 0x80, {vT[1][0]}""".split("\n")
    ep += [f"v_add_u32 {x}, {s.kvw}, {x}" for x in vT[0] + vT[1]]
    ep += [[I(x.strip()) for x in f"""s_cmp_ge_u32 {s.g}, 1
    s_cselect_b32 {s.t6}, 0, {OOB}
    s_cselect_b32 {s.t4}, 0, 128""".split("\n")], [I(x.strip()) for x in f"""s_cmp_ge_u32 {s.g}, 2
    s_cselect_b32 {s.t7}, 0, {OOB}
    s_cselect_b32 {s.t5}, 0, 256""".split("\n")], f"s_add_u32 {s.t4}, {s.t4}, 128", f"s_sub_u32 {s.t4}, {s.t4}, {s.t5}",
           f"s_add_u32 {s.t5}, {s.t5}, {s.fkr}"]
    ep += f"""v_add_u32 {vr(H1)}, {s.t6}, {vL16}
    v_add_u32 {vr(H2)}, {s.t7}, {vL16}
    v_bfe_u32 {vr(PA)}, {vLane}, 2, 1
    v_mul_lo_u32 {vr(PA)}, {vr(PA)}, {s.t4}
    v_lshl_add_u32 {vr(PA)}, {tok}, 2, {vr(PA)}
    v_add_u32 {vr(PA)}, {s.t5}, {vr(PA)}""".split("\n")
    B.spread([x.strip() if isinstance(x, str) else x for x in ep], max(e + 1, free + 1, G.last_use[10] + 1))
    fo = OPT.get("fo", 3)
    flag = [wait_vm(lastst)] + flag_store(s.fkw, True)
    if fo:
        B.at(len(B.m) - fo, flag)
    B.emit(1)
    stamp(4)
    P(pack(12, QSA, CA) + pack(13, QB, CA) + pack(14, QB + 2, CA))
    if not fo:
        P(flag)
    P(f"""v_cndmask_b32 {vr(QSB)}, 0, {vr(QSA)}, {HALF}
    v_cndmask_b32 {vr(QSB + 1)}, 0, {vr(QSA + 1)}, {HALF}
    v_cndmask_b32 {vr(QSA)}, {vr(QSA)}, 0, {HALF}
    v_cndmask_b32 {vr(QSA + 1)}, {vr(QSA + 1)}, 0, {HALF}""")
    stamp(5)


SB = [ACC, ACC + 16]
OA = [ACC + 32, ACC + 48]
KX, KS, V0, V1 = XA, XA + 4, XA + 8, XA + 12


def o_stores():
    return [f"buffer_store_dwordx4 {vr(PB, 4)}, {AD[7]}, {WS}, {s.o1} offen",
            f"buffer_store_dwordx4 {vr(PB + 4, 4)}, {AD[7]}, {WS}, {s.o1} offen offset:512",
            f"buffer_store_dwordx2 {vr(MK, 2)}, {AD[8]}, {WS}, {s.o2} offen"]


def p2(pre_loads, body_loads):
    base = lambda u: (8 - (u >> 1)) * KV_T
    rdK = lambda u: I(f"ds_read_b128 {ar(KX, 4)}, {vKa} offset:{base(u) + 1024 * (u & 1)}")
    rdS = lambda u: I(f"ds_read_b64 {ar(KS, 2)}, {vKs} offset:{base(u) + 2048}")
    rdV = lambda u, st: [I(f"ds_read_b64_tr_b16 {ar((V0, V1)[st] + 2 * h, 2)}, {vT[u & 1][h]} "
                           f"offset:{base(u) + 2560 + 1536 * (u & 1) + 256 * st}") for h in range(2)]
    cin = lambda u: vr(MK, 16) if u < 2 or u >= 16 else "0"
    qk16 = lambda u: mf32(vr(SB[u & 1], 16), ar(KX, 4), vr((QA, QB)[u & 1], 4), cin(u))
    qk8 = lambda u: mf8(vr(SB[u & 1], 16), ar(KS, 2), vr((QSA, QSB)[u & 1], 2), vr(SB[u & 1], 16))
    pv = lambda u, st: mf32(vr(OA[u & 1], 16), ar((V0, V1)[st], 4), vr(PB + 4 * st, 4),
                            "0" if (u < 2 and st == 0) else vr(OA[u & 1], 16))

    def E(u, q):
        b = SB[u & 1] + 4 * q
        return [f"v_exp_f32 {vr(b + r)}, {vr(b + r)}" for r in range(4)] + \
               [f"v_cvt_pk_bf16_f32 {vr(PB + 2 * q + i)}, {vr(b + 2 * i)}, {vr(b + 2 * i + 1)}" for i in range(2)]

    tok, hf = vr(TMP + 20), vr(TMP + 21)
    stg = []

    def halo():
        code_touch("L_code_end-16384" if LAYER else "L_p3_0")
        poll(vr(PA), 0, LAYER + 1, tok)
        stamp(6)
        for j in range(4):
            d = (6 - 2 * j) * KV_T
            P(f"s_add_u32 m0, {s.hw}, {d}\ns_add_u32 {s.oA}, {s.kld}, {d + KV_L * LAYER}")
            for i in range(3):
                last = P(f"buffer_load_dwordx4 {vr(H1 if j < 2 else H2)}, {WS}, {s.oA} offen offset:{1024 * i} sc1 lds")
            stg.append(last)

    hpos = OPT.get("hpos", 0)
    P(f"L_p2_{LAYER}:")
    P([rdK(0), rdS(0)] + rdV(0, 0))
    P(flat(pre_loads))
    P([qk16(0), rdK(1), qk8(0)])
    P(lane_parts32(tok, hf))
    P(f"""v_lshrrev_b32 {AD[8]}, 4, {tok}
    v_mul_u32_u24 {AD[8]}, 20480, {AD[8]}
    v_and_b32 {tok}, 15, {tok}
    v_lshl_add_u32 {AD[8]}, {tok}, 4, {AD[8]}
    v_lshl_add_u32 {AD[7]}, {hf}, 8, {AD[8]}
    v_lshl_add_u32 {AD[8]}, {hf}, 3, {AD[8]}""")
    extra = list(body_loads)
    if not wt(0):
        extra[OPT.get("otp", 4):OPT.get("otp", 4)] = touch_loads(o_stores())
    s0, s1 = OPT.get(f"x0{LAYER}", 4), OPT.get(f"x1{LAYER}", 29)
    n = s1 - s0
    quota = [0] * s0 + [len(extra) * (i + 1) // n - len(extra) * i // n for i in range(n)] + [0] * (31 - s1)

    def ex():
        return flat([extra.pop(0) for _ in range(quota.pop(0))])

    for u in range(18):
        nxt = u + 1 < 18 and u != 1
        if u == hpos:
            halo()
        if u == 2:
            for r in range(16):
                P(f"v_xor_b32 {vr(MK + r)}, {s.ninf}, {vr(MK + r)}")
            P(wait_vm(stg[0]))
            P("s_waitcnt lgkmcnt(0)\ns_barrier")
            stamp(7)
            P([rdK(2), rdS(2)] + rdV(2, 0) + [qk16(2), rdK(3), qk8(2)])
        if nxt:
            P(qk16(u + 1))
            if u > 2:
                P(wait_lg(prevV1))
            if u in (4, 8, 12):
                P(wait_vm(stg[u // 4]))
                P("s_barrier")
            if u + 2 < 18 and u != 0:
                lastK = P(rdK(u + 2))
            if u >= 2:
                P(ex())
        P(E(u, 0))
        if nxt:
            P(qk8(u + 1))
        P(E(u, 1))
        if u > 0:
            P(pv(u - 1, 1))
            if u >= 2 and u + 2 < 18:
                P(wait_lg(lastK))
        if u % 2 == 0 and u >= 2 and u + 2 < 18:
            P(rdS(u + 2))
        prevV1 = P(rdV(u, 1))
        P(E(u, 2))
        P(pv(u, 0))
        if nxt:
            P(rdV(u + 1, 0))
        if u >= 2:
            P(ex())
        P(E(u, 3))
    P(pv(17, 1))
    assert not extra, len(extra)
    la, lb = vr(OA[0] + 12), vr(OA[1] + 12)
    lo, hi = (127 - 40) << 23, (127 + 40) << 23
    if OPT["force_fallback"]:
        hi = lo
    P(f"""s_mov_b32 {s.t2}, {hi - lo}
    s_mov_b32 {s.t8}, {LAYER}
    v_subrev_u32 {tok}, {lo}, {la}
    v_subrev_u32 {hf}, {lo}, {lb}
    v_max_u32 {tok}, {tok}, {hf}
    v_cmp_lt_u32 vcc, {s.t2}, {tok}
    s_cbranch_{"execz" if OPT["nob"] else "vccnz"} L_truemax
    L_norm{LAYER}:
    v_rcp_f32 {tok}, {la}
    v_rcp_f32 {hf}, {lb}""")
    for hd in range(2):
        for r in range(0, 12, 2):
            P(f"v_pk_mul_f32 {vr(OA[hd] + r, 2)}, {vr(OA[hd] + r, 2)}, {vr(TMP + 20, 2)} op_sel:[0,{hd}] op_sel_hi:[1,{hd}]")
        for i in range(4):
            P(f"v_cvt_pk_bf16_f32 {vr(PB + 4 * hd + i)}, {vr(OA[hd] + 2 * i)}, {vr(OA[hd] + 2 * i + 1)}")
        for i in range(2):
            P(f"v_cvt_pk_bf16_f32 {vr(MK + 2 * hd + i)}, {vr(OA[hd] + 8 + 2 * i)}, {vr(OA[hd] + 9 + 2 * i)}")
    P(f"""v_cndmask_b32 {vr(MK)}, {vr(MK)}, {vr(MK + 2)}, {HALF}
    v_cndmask_b32 {vr(MK + 1)}, {vr(MK + 1)}, {vr(MK + 3)}, {HALF}""")
    P(handoff(o_stores(), 0))
    stamp(8)
    set_flag(s.fow, 2 * LAYER + 1)
    if LAYER == 0:
        P(colsum_put(XV + 24, WB, 69632))
        P("s_waitcnt lgkmcnt(0)")
    P("s_barrier")


def truemax_path():
    T = Prog()
    S_, m, m2 = SB[0], vr(TMP + 20), vr(TMP + 21)
    ak, as_, av0, av1 = vr(TMP + 22), vr(TMP + 23), vr(TMP + 12), vr(TMP + 13)
    q4, q2, O_ = MK, MK + 4, SB[1]
    n, i, ps, hd, flip, sel = s.t2, s.t3, s.t4, s.t5, s.t6, s.t7
    top = 8 * KV_T
    T(f"""L_truemax:
    s_nop 15
    s_lshl_b32 {n}, {s.g}, 2
    s_add_u32 {n}, {n}, {s.w}
    s_add_u32 {n}, {n}, 1
    s_min_u32 {n}, {n}, 9
    s_mov_b32 {hd}, 0""")
    for r in range(4):
        T(f"v_mov_b32 {vr(q4 + r)}, {vr(QA + r)}")
    T(f"""v_mov_b32 {vr(q2)}, {vr(QSA)}
    v_mov_b32 {vr(q2 + 1)}, {vr(QSA + 1)}
    L_tm_head:
    v_mov_b32 {m}, {s.ninf}
    s_mov_b32 {ps}, 0""")
    for r in range(16):
        T(f"v_mov_b32 {vr(O_ + r)}, 0")
    T(f"""L_tm_pass:
    s_mov_b32 {i}, 0
    s_lshl_b32 {flip}, {hd}, 10
    s_add_u32 {flip}, {flip}, {top}
    v_add_u32 {ak}, {flip}, {vKa}
    v_add_u32 {as_}, {top + 2048}, {vKs}
    v_add_u32 {av0}, {top + 2560}, {vT[0][0]}
    v_add_u32 {av1}, {top + 2560}, {vT[0][1]}
    s_cmp_eq_u32 {hd}, 0
    s_cbranch_scc1 L_tm_tile
    v_add_u32 {av0}, {top + 4096}, {vT[1][0]}
    v_add_u32 {av1}, {top + 4096}, {vT[1][1]}
    L_tm_tile:
    ds_read_b128 {ar(KX, 4)}, {ak}
    ds_read_b64 {ar(KS, 2)}, {as_}""")
    for st in range(2):
        for h in range(2):
            T(f"ds_read_b64_tr_b16 {ar((V0, V1)[st] + 2 * h, 2)}, {(av0, av1)[h]} offset:{256 * st}")
    T(f"""s_cmp_eq_u32 {i}, 8
    s_cselect_b32 {flip}, -1, 0
    s_and_b32 {sel}, {i}, 7
    s_cselect_b32 {sel}, 0, {s.ninf}""")
    for r in range(16):
        c = 8 * (r >> 2) + (r & 3)
        T(f"""v_subrev_u32 {vr(S_ + r)}, {c}, {vDm}
        v_xor_b32 {vr(S_ + r)}, {flip}, {vr(S_ + r)}
        v_and_b32 {vr(S_ + r)}, {sel}, {vr(S_ + r)}""")
    T(mf32(vr(S_, 16), ar(KX, 4), vr(q4, 4), vr(S_, 16)))
    T(mf8(vr(S_, 16), ar(KS, 2), vr(q2, 2), vr(S_, 16)))
    T(f"s_waitcnt lgkmcnt(0)\ns_nop 15\ns_cmp_lg_u32 {ps}, 0\ns_cbranch_scc1 L_tm_exp")
    for r in range(0, 16, 2):
        T(f"v_max3_f32 {m}, {vr(S_ + r)}, {vr(S_ + r + 1)}, {m}")
    T("s_branch L_tm_next\nL_tm_exp:")
    for r in range(16):
        T(f"v_sub_f32 {vr(S_ + r)}, {vr(S_ + r)}, {m}")
    for r in range(16):
        T(f"v_exp_f32 {vr(S_ + r)}, {vr(S_ + r)}")
    for r in range(8):
        T(f"v_cvt_pk_bf16_f32 {vr(PB + r)}, {vr(S_ + 2 * r)}, {vr(S_ + 2 * r + 1)}")
    T(mf32(vr(O_, 16), ar(V0, 4), vr(PB, 4), vr(O_, 16)))
    T(mf32(vr(O_, 16), ar(V1, 4), vr(PB + 4, 4), vr(O_, 16)))
    T(f"""s_nop 15
    L_tm_next:
    v_subrev_u32 {ak}, {KV_T}, {ak}
    v_subrev_u32 {as_}, {KV_T}, {as_}
    v_subrev_u32 {av0}, {KV_T}, {av0}
    v_subrev_u32 {av1}, {KV_T}, {av1}
    s_add_u32 {i}, {i}, 1
    s_cmp_lt_u32 {i}, {n}
    s_cbranch_scc1 L_tm_tile
    s_cmp_lg_u32 {ps}, 0
    s_cbranch_scc1 L_tm_done
    v_mov_b32 {m2}, {m}
    v_permlane32_swap_b32 {m}, {m2}
    v_max_f32 {m}, {m}, {m2}
    s_mov_b32 {ps}, 1
    s_branch L_tm_pass
    L_tm_done:
    s_cmp_lg_u32 {hd}, 0
    s_cbranch_scc1 L_tm_last""")
    for r in range(16):
        T(f"v_mov_b32 {vr(OA[0] + r)}, {vr(O_ + r)}")
    for r in range(4):
        T(f"v_mov_b32 {vr(q4 + r)}, {vr(QB + r)}")
    T(f"""v_mov_b32 {vr(q2)}, {vr(QSB)}
    v_mov_b32 {vr(q2 + 1)}, {vr(QSB + 1)}
    s_mov_b32 {hd}, 1
    s_branch L_tm_head
    L_tm_last:""")
    for r in range(16):
        T(f"v_mov_b32 {vr(OA[1] + r)}, {vr(O_ + r)}")
    T(f"s_cmp_eq_u32 {s.t8}, 0\ns_cbranch_scc1 L_norm0\ns_branch L_norm1")
    T.resolve_waits()
    T.pad_hazards()
    P.tail += T.ins


def ksplit(nk, bfrag, aring, abase, astride, red, gap_loads, body_loads, body_at, epoch, sid):
    acc = lambda i, t: vr(ACC + 20 * (i & 1) + 4 * t, 4)
    BASE = ACC + 40
    wad, rad, u = AD[3], AD[4], vr(TMP + 22)
    sb = [s.t4, s.t5, s.t6, s.t7]
    wr = [s.t0, s.t1, s.t2]
    P(flat(gap_loads))
    if nk == 5 and LAYER == 0:
        P(colsum_get(XV + 24, 1, 69632, vr(TMP + 20)))
    if nk > 5 and LAYER == 0:
        code_touch("L_p1_1")
    for i in range(4):
        P(f"s_add_u32 {s.t8}, {s.w}, {i + 1}\ns_and_b32 {s.t8}, {s.t8}, 3")
        P(lin(sb[i], 0, (s.t8, astride), (abase, 1)))
        if i < 3:
            P(lin(wr[i], red + 5120 * i, (s.t8, 15360)))
    P(lin(s.t8, red, (s.w, 15360)))
    P(f"""v_add_u32 {rad}, {s.t8}, {vL16}
    v_lshlrev_b32 {u}, 2, {vLane}
    v_and_b32 {u}, 31, {u}""")
    for i in range(10):
        P(f"v_lshlrev_b32 {vr(BASE + 2 * i)}, 16, {vr(RES + i)}\nv_and_b32 {vr(BASE + 2 * i + 1)}, 0xffff0000, {vr(RES + i)}")
    poll(u, s.fo_r, epoch, vr(TMP + 20))
    stamp(sid)
    nr = len(aring)
    A = []
    for i in range(4):
        A += RegStream([aring[(i * nk + k) % nr] for k in range(nk)], sb[i], s.oA, weight=False).take()
    ms, lastuse, done = [], {}, {}
    for i in range(4):
        order = [(k, t) for k in range(nk) for t in range(5)]
        if nk == 5 and i >= 2:
            order = [(k, t) for t in range(5) for k in range(nk)]
        for k, t in order:
            lastuse[i * nk + k] = len(ms)
            done[(i, t)] = len(ms)
            ms.append(mf16(acc(i, t), bfrag(5 * k + t), aring[(i * nk + k) % nr], acc(i, t) if k else 0))
    B = Beats(ms)
    npre = 8
    P(flat(A[:npre]))
    b = 0
    for n in range(npre, 4 * nk):
        b = max(b, lastuse[n - nr] if n >= nr else 0)
        B.at(int(b), list(A[n]))
        b += 4.5
    B.every(body_loads, body_at[0], body_at[1])
    lastw, endw = [], []
    b = 0
    for i in range(3):
        B.at(max(b, done[(i, 0)] + 7) - 1, f"v_add_u32 {wad}, {wr[i]}, {vL16}")
        for t in range(5):
            b = max(b, done[(i, t)] + 7)
            x = B.at(b, f"ds_write_b128 {wad}, {acc(i, t)} offset:{1024 * t}")
            b += 4 if nk > 5 else 3
        lastw.append(x)
        endw.append(b)
    PT = [TMP, XV, XV + 20] if nk == 5 else [TMP, ACC, TMP]
    rd = lambda p: [f"ds_read_b128 {vr(PT[p] + 4 * t, 4)}, {rad} offset:{5120 * p + 1024 * t}" for t in range(5)]
    ad = lambda p: [f"v_add_f32 {vr(BASE + e)}, {vr(BASE + e)}, {vr(PT[p] + e)}" for e in range(20)]
    B.at(b, wait_lg(lastw[2]))
    B.at(b, "s_barrier")
    if nk == 5:
        B.spread(rd(2), b)
        B.at(endw[1] + 1, wait_lg(lastw[1]))
        B.at(endw[1] + 1, "s_barrier")
        B.spread(rd(0) + rd(1) + ["|"] + ad(0) + ad(1), endw[1] + 1)
    else:
        B.spread(rd(0) + rd(1) + ["|", "|"] + ad(0) + rd(2) + ad(1) + ad(2), b)
    B.emit(3 if nk == 5 else 5)
    for t in range(5):
        for e in (0, 2):
            r = ACC + 20 + 4 * t + e
            if nk == 5:
                P(f"v_pk_add_f32 {vr(BASE + 4 * t + e, 2)}, {vr(PT[2] + 4 * t + e, 2)}, {vr(BASE + 4 * t + e, 2)}")
            P(f"v_pk_add_f32 {vr(r, 2)}, {vr(r, 2)}, {vr(BASE + 4 * t + e, 2)}")
    for i in range(10):
        P(f"v_cvt_pk_bf16_f32 {vr(RES + i)}, {vr(ACC + 20 + 2 * i)}, {vr(ACC + 21 + 2 * i)}")


def p3(gap_loads, body_loads):
    P(f"L_p3_{LAYER}:")
    P(x_addr())
    aring = [vr(XV + 4 * i, 4) for i in range(10)] + [ar(XA + 4 * i, 4) for i in range(10)]
    ksplit(5, b3frag, aring, s.oal, 20480, 0, x_touch(1) + gap_loads, body_loads, (56, 5), 2 * LAYER + 1, 9)
    publish_x(1)
    stamp(10)
    set_flag(s.fxw, 2 * LAYER + 1)
    P("s_barrier")


def h_store(t, st, src):
    if t < 3:
        return f"buffer_store_dwordx4 {src}, {AD[0]}, {WS}, {s.h1} offen offset:{1024 * t + 512 * st}"
    return f"buffer_store_dwordx4 {src}, {AD[0]}, {WS}, {s.h2} offen"


def p4(B5, n_mid, n_late):
    t3a = AD[5]
    tok, hf, u = vr(TMP + 20), vr(TMP + 21), vr(TMP + 22)
    L = DmaStream(s.w14, 81920, 0, 4)
    P(flat(L.take(OPT.get("g34", 8))))
    pre, sld = stats_loads()
    P(pre)
    P(lane_parts32(tok, hf))
    P(f"""v_lshrrev_b32 {AD[0]}, 4, {tok}
    v_mul_u32_u24 {AD[0]}, 57344, {AD[0]}
    v_and_b32 {tok}, 15, {tok}
    v_lshl_add_u32 {t3a}, {hf}, 4, {tok}
    v_lshlrev_b32 {t3a}, 4, {t3a}
    v_add_u32 {AD[0]}, {AD[0]}, {t3a}
    v_add_u32 {t3a}, 40960, {t3a}
    v_lshlrev_b32 {u}, 2, {vLane}
    v_and_b32 {u}, 63, {u}""")
    poll(u, s.fxr, 2 * LAYER + 1, tok)
    stamp(11)
    G = Gemm4(81920, 0, 40960, t3a, 512, 1, OPT.get("stag4", 10))
    B, pb2, pb3 = G.B, G.pb2, G.pb3
    A = RegStream([xfrag(k) for k in range(40)], s.xld, s.oA, weight=False).take()
    P(flat(A[:8]))
    P("s_barrier")
    P(G.first)
    e = G.a_loads(A, sld, 24, OPT.get("ar4", 2.0))
    B.spread(stats_calc(True), e - 8, pb2 - 4)
    tl = [] if wt(2) else touch_loads([h_store(t, st, "v0") for t in range(3) for st in range(2)] + [h_store(3, 0, "v0")])
    while L.i < L.n:
        lo = 16384 * (L.i // 4)
        e = B.every(L.take(4 - L.i % 4), e, 2)
        d = G.deadline(lo, lo + 16384)
        assert d >= e - 2
        B.at(d, wait_vm(L.last))
        B.at(d, "s_barrier")
        e = B.every(tl[:4], e, 1)
        tl = tl[4:]
    e = B.every(B5.take(n_mid), e, OPT.get(f"br4{LAYER}", 2.6))
    B.every(B5.take(n_late), max(e, pb3 + 2), 2.6)

    def silu(t, n):
        o, b = [], ACC + 16 * t
        e0 = [vr(TMP + i) for i in range(4)]
        for p in range(n // 2):
            x0, x1 = vr(b + 2 * p), vr(b + 2 * p + 1)
            y0, y1 = e0[2 * (p & 1)], e0[2 * (p & 1) + 1]
            o += [f"v_mul_f32 {y0}, {vr(CA)}, {x0}", f"v_mul_f32 {y1}, {vr(CA)}, {x1}",
                  f"v_exp_f32 {y0}, {y0}", f"v_exp_f32 {y1}, {y1}",
                  f"v_fma_f32 {y0}, {y0}, {vr(CB)}, {vr(CB)}", f"v_fma_f32 {y1}, {y1}, {vr(CB)}, {vr(CB)}",
                  f"v_rcp_f32 {y0}, {y0}", f"v_rcp_f32 {y1}, {y1}",
                  f"v_mul_f32 {x0}, {x0}, {y0}", f"v_mul_f32 {x1}, {x1}, {y1}",
                  f"v_cvt_pk_bf16_f32 {vr(b + p)}, {x0}, {x1}"]
        o.append(handoff([h_store(t, st, vr(b + 4 * st, 4)) for st in range(n // 8)], 2))
        return o

    e = B.spread(silu(0, 16) + silu(1, 16), pb2 + 3)
    B.spread(silu(2, 16), max(e, pb3 + 3))
    B.emit(4)
    P(silu(3, 8))
    stamp(12)
    set_flag(s.fow, 2 * LAYER + 2)
    P("s_barrier")


def p5(gap_loads, body_loads, body_at):
    aring = [vr(XV + 56 + 4 * i, 4) for i in range(21)] + [ar(WB + 4 * i, 4) for i in range(6)]
    if LAYER == 0:
        P(x_addr())
        gap_loads = gap_loads + x_touch(3)
    else:
        P(row_addr(AD[0], AD[1]))
    ksplit(14, b5frag, aring, s.hal, 57344, 102400, gap_loads, body_loads, body_at, 2 * LAYER + 2, 13)
    if LAYER == 0:
        publish_x(3)
        stamp(14)
        set_flag(s.fxw, 2)
        P("s_barrier")
    else:
        pol = ("", " sc1", " nt", " sc0 sc1")[OPT.get("outpol", 0)]
        P(f"""buffer_store_dwordx4 {vr(RES, 4)}, {AD[0]}, {OUT}, {s.row} offen{pol}
        buffer_store_dwordx4 {vr(RES + 4, 4)}, {AD[0]}, {OUT}, {s.row} offen offset:64{pol}
        buffer_store_dwordx2 {vr(RES + 8, 2)}, {AD[1]}, {OUT}, {s.row} offen offset:128{pol}""")
        stamp(14)


def build():
    global LAYER
    o = OPT.get
    B1 = DmaStream(s.wq4, 0, 0, 9, 2)
    boot = p0(B1)
    for LAYER in range(2):
        B3 = RegStream([b3frag(n) for n in range(25)], s.wo, s.oB)
        B4 = DmaStream(s.w14, 0, 81920, 5)
        B5 = RegStream([b5frag(n) for n in range(70)], s.w2, s.oB, first=51 * LAYER)
        p1(B1, boot, B5.take(0 if LAYER else o("e0", 16)))
        stop_after(1)
        if LAYER == 0:
            p2(B5.take(o("a0", 6)), B3.take() + colsum_loads(1, WB) + B4.take(o("b0", 4)))
            stop_after(2)
            p3(B4.take(o("c0", 8)), B4.take())
            stop_after(3)
            p4(B5, min(51 - B5.i, o("d0", 30)), 0)
            stop_after(4)
            B1 = DmaStream(s.wq4, 0, 0, 9, 2)
            p5(B5.take(), B1.take(24), (10, 9))
            stop_after(5)
            P(flat(B1.take(8)))
        else:
            p2(B3.take(o("a1", 0)), B3.take() + B4.take(o("b1", 8)))
            p3(B4.take(o("c1", 4)), B4.take())
            p4(B5, 0, o("d1", 12))
            p5(B5.take(), [], (0, 1))
    P("L_fin:")
    if OPT["stamps"]:
        P("s_waitcnt vmcnt(0)")
        P(lin(s.t0, STAMP, ("s2", 1024), (s.w, 256)))
        stamp(15)
        rstamp(61)
        P(f"v_lshlrev_b32 {vr(TMP)}, 2, {vLane}\nbuffer_store_dword {vStamp}, {vr(TMP)}, {WS}, {s.t0} offen")
    P("L_end:\ns_endpgm")
    truemax_path()
    P.resolve_waits()
    added = P.pad_hazards()
    P.ins = [x for x in P.ins if x.kind != "touch"]
    P.tail.append(I("L_code_end:"))
    return added


def main():
    out = sys.argv[1]
    for a in sys.argv[2:]:
        k, v = a.split("=")
        OPT[k] = float(v) if "." in v else int(v)
    added = build()
    K = NAME + "_kernel"
    txt = open("head.txt").read() + f"""; @launch grid=(256,1,1) block=(256,1,1) lds=163840
.amdgcn_target "amdgcn-amd-amdhsa--gfx950"
.text
.globl {K}
.p2align 8
.type {K},@function
{K}:
""" + P.text() + f""".section .rodata,"a"
.p2align 6
.amdhsa_kernel {K}
  .amdhsa_next_free_vgpr 512
  .amdhsa_next_free_sgpr 102
  .amdhsa_accum_offset 256
  .amdhsa_group_segment_fixed_size 0
  .amdhsa_kernarg_size 72
  .amdhsa_user_sgpr_count 2
  .amdhsa_user_sgpr_kernarg_segment_ptr 1
  .amdhsa_system_sgpr_workgroup_id_x 1
.end_amdhsa_kernel
"""
    open(out, "w").write(txt)
    print("instructions", len(P.ins) + len(P.tail), "wait states added", added, "sgprs", _sn)


if __name__ == "__main__":
    main()
```

```python
import subprocess, sys
import gen as G
K = G.NAME + "_kernel"
RES = 100 << 20
def desc(n, v): return f""".p2align 6
.amdhsa_kernel {n}
  .amdhsa_next_free_vgpr {v}
  .amdhsa_next_free_sgpr 48
  .amdhsa_accum_offset {v}
  .amdhsa_group_segment_fixed_size 0
  .amdhsa_kernarg_size 72
  .amdhsa_user_sgpr_count 2
  .amdhsa_user_sgpr_kernarg_segment_ptr 1
  .amdhsa_system_sgpr_workgroup_id_x 1
.end_amdhsa_kernel
"""
def make(out, op, slot, size, off, n, amp):
    subprocess.run([sys.executable, "gen_v2.py", "tmp_diag.s"], check=True)
    t = open("tmp_diag.s").read()
    L = "; @launch grid=(256,1,1) block=(256,1,1) lds=163840\n"
    t = t.replace(L, "; @launch kernel=burst_kernel grid=(256,1,1) block=(256,1,1) lds=131072\n"
                  f"; @launch kernel={K} grid=(256,1,1) block=(256,1,1) lds=163840\n; @launch kernel=diag_kernel grid=(1,1,1) block=(64,1,1) lds=0\n")
    b = f"""
.globl burst_kernel
.p2align 8
.type burst_kernel,@function
burst_kernel:
    s_cmp_ge_u32 s2, 256
    s_cbranch_scc1 B_end
    s_load_dwordx2 s[4:5], s[0:1], 64
    s_load_dwordx2 s[8:9], s[0:1], {8*slot}
    v_lshrrev_b32 v1, 6, v0
    v_and_b32 v2, 63, v0
    v_readfirstlane_b32 s3, v1
    v_lshlrev_b32 v2, 4, v2
    v_mov_b32 v4, 0
    v_mov_b32 v5, 0
    v_mov_b32 v6, 0
    v_mov_b32 v7, 0
    s_waitcnt lgkmcnt(0)
    s_mov_b32 s6, {G.WS_BYTES}
    s_mov_b32 s7, 0x20000
    s_mov_b32 s10, {size}
    s_mov_b32 s11, 0x20000
    s_lshl_b32 s14, s2, 2
    s_add_u32 s14, s14, s3
    s_mul_i32 s40, s14, {n*1024}
    s_add_u32 s40, s40, {off}
    s_barrier
    s_memrealtime s[16:17]
    s_waitcnt lgkmcnt(0)
"""
    for i in range(n):
        b += f"    s_add_u32 s15, s40, {i*1024}\n"
        b += f"    buffer_load_dwordx4 v[{8+4*i}:{11+4*i}], v2, s[8:11], s15 offen\n" if op == "r" else "    buffer_store_dwordx4 v[4:7], v2, s[8:11], s15 offen sc1\n"
    b += f"""    s_waitcnt vmcnt(0)
    s_memrealtime s[18:19]
    s_waitcnt lgkmcnt(0)
    s_sub_u32 s18, s18, s16
    v_mov_b32 v4, s18
    s_lshl_b32 s14, s14, 2
    s_add_u32 s14, s14, {RES}
    buffer_store_dword v4, v5, s[4:7], s14 offen
B_end:
    s_endpgm
.globl diag_kernel
.p2align 8
.type diag_kernel,@function
diag_kernel:
    s_cmp_ge_u32 s2, 1
    s_cbranch_scc1 D_end
    s_load_dwordx2 s[4:5], s[0:1], 64
    v_lshlrev_b32 v1, 6, v0
    s_waitcnt lgkmcnt(0)
    s_mov_b32 s6, {G.WS_BYTES}
    s_mov_b32 s7, 0x20000
    s_mov_b32 s8, {RES}
    buffer_load_dword v2, v1, s[4:7], s8 offen
    s_waitcnt vmcnt(0)
    s_mov_b32 s10, 0
"""
    for l in range(64):
        b += f"    v_readlane_b32 s12, v2, {l}\n    s_nop 1\n    s_add_u32 s10, s10, s12\n"
    b += f"""    s_mul_i32 s10, s10, {amp}
    s_lshr_b32 s10, s10, 6
    s_min_u32 s10, s10, 20000
    s_memrealtime s[12:13]
    s_waitcnt lgkmcnt(0)
D_spin:
    s_memrealtime s[14:15]
    s_waitcnt lgkmcnt(0)
    s_sub_u32 s14, s14, s12
    s_cmp_lt_u32 s14, s10
    s_cbranch_scc1 D_spin
D_end:
    s_endpgm
"""
    t = t.replace('.section .rodata,"a"', b + '.section .rodata,"a"') + desc("burst_kernel", 64) + desc("diag_kernel", 64)
    open(out, "w").write(t)
make("d2_base.s", "w", 8, G.WS_BYTES, 64 << 20, 10, 0)
make("d2_w64.s", "w", 8, G.WS_BYTES, 64 << 20, 10, 10)
make("d2_w240.s", "w", 8, G.WS_BYTES, 240 << 20, 10, 10)
make("d2_r64.s", "r", 8, G.WS_BYTES, 64 << 20, 10, 10)
make("d2_r240.s", "r", 8, G.WS_BYTES, 240 << 20, 10, 10)
make("d2_rbx.s", "r", 3, 2048 * 1280, 0, 2, 10)
```

```python
from asmlib import *

def pro(a):
    a(header([f"; @launch grid=(256,1,1) block=(256,1,1) lds=131072"]))
    a(kernel_begin("b_kernel"))
    a(f"""
    s_load_dwordx4 s[4:7], s[0:1], 0
    v_lshrrev_b32 v1, 6, v0
    s_nop 1
    v_readfirstlane_b32 s3, v1
    s_waitcnt lgkmcnt(0)
    s_mov_b32 s8, s4
    s_mov_b32 s9, s5
    s_mov_b32 s10, 0x100000
    s_mov_b32 s11, 0x00020000
    s_mov_b32 s28, s6
    s_mov_b32 s29, s7
    s_mov_b32 s30, 0x10000000
    s_mov_b32 s31, 0x00020000
    s_lshl_b32 s12, s2, 2
    s_add_u32 s12, s12, s3
    s_lshl_b32 s12, s12, 6
    v_and_b32 v2, 63, v0
    s_mov_b32 s13, 0
    """)

def epi(a, name, npass):
    a(f"""
    s_waitcnt vmcnt(0)
    s_memtime s[18:19]
    s_waitcnt lgkmcnt(0)
    s_sub_u32 s20, s18, s16
    v_mov_b32 v1, s20
    v_mov_b32 v3, 0
    buffer_store_dword v1, v3, s[8:11], s12 offen
    s_add_u32 s12, s12, 4
    s_add_u32 s13, s13, 1
    s_cmp_lt_u32 s13, {npass}
    s_cbranch_scc1 L_loop
    s_endpgm
    """)
    a(RODATA)
    a(descriptor("b_kernel", 256, 64))
    open(f"b6_{name}.s", "w").write(a.text())

def order(name, depth0, nload0, depth, share):
    a = Asm(); pro(a)
    nsl = 32 // share
    a(f"""
    v_lshlrev_b32 v2, 4, v2
    s_lshr_b32 s14, s2, 3
    s_and_b32 s40, s14, 7
    s_lshl_b32 s40, s40, 2
    s_add_u32 s40, s40, s3
    s_lshl_b32 s40, s40, 16
    s_and_b32 s41, s14, {nsl-1}
    s_mul_i32 s41, s41, {nload0*1024}
    s_add_u32 s41, s41, 0x400000
L_loop:
    s_barrier
    s_memtime s[16:17]
    s_waitcnt lgkmcnt(0)
    s_cmp_eq_u32 s3, 0
    s_cbranch_scc1 L_w0
    s_mov_b32 s15, s40
    """)
    for i in range(64):
        r = 8 + 4 * (i % depth)
        a(f"buffer_load_dwordx4 v[{r}:{r+3}], v2, s[28:31], s15 offen\ns_add_u32 s15, s15, 1024")
        if i >= depth - 1: a(f"s_waitcnt vmcnt({depth-1})")
    a(f"s_branch L_done\nL_w0:\ns_and_b32 s15, s13, 7\ns_mul_i32 s15, s15, {nsl*nload0*1024}\ns_add_u32 s15, s15, s41")
    for i in range(nload0):
        r = 8 + 4 * (i % depth0)
        a(f"buffer_load_dwordx4 v[{r}:{r+3}], v2, s[28:31], s15 offen\ns_add_u32 s15, s15, 1024")
        if i >= depth0 - 1: a(f"s_waitcnt vmcnt({depth0-1})")
    a("L_done:")
    epi(a, name, 16)

def strided(name, kind):
    a = Asm(); pro(a)
    if kind == "r32":
        a("v_and_b32 v4, 31, v2\nv_mul_u32_u24 v4, 1280, v4\nv_lshrrev_b32 v5, 5, v2\nv_lshl_add_u32 v2, v5, 4, v4"); step = 32; rows = 32
    elif kind == "r16":
        a("v_and_b32 v4, 15, v2\nv_mul_u32_u24 v4, 1280, v4\nv_lshrrev_b32 v5, 4, v2\nv_lshl_add_u32 v2, v5, 4, v4"); step = 64; rows = 16
    elif kind == "q64":
        a("v_lshrrev_b32 v4, 2, v2\nv_mul_u32_u24 v4, 1280, v4\nv_and_b32 v5, 3, v2\nv_lshl_add_u32 v2, v5, 4, v4"); step = 64; rows = 16
    elif kind == "q128":
        a("v_lshrrev_b32 v4, 3, v2\nv_mul_u32_u24 v4, 1280, v4\nv_and_b32 v5, 7, v2\nv_lshl_add_u32 v2, v5, 4, v4"); step = 128; rows = 8
    a(f"""
    s_lshr_b32 s14, s2, 3
    s_and_b32 s40, s14, 1
    s_lshl_b32 s40, s40, 2
    s_add_u32 s40, s40, s3
    s_mul_i32 s40, s40, {32*1280}
L_loop:
    s_barrier
    s_memtime s[16:17]
    s_waitcnt lgkmcnt(0)
    """)
    per_row = 1280 // step
    for i in range(40):
        off = (i // per_row) * rows * 1280 + (i % per_row) * step
        a(f"s_add_u32 s15, s40, {off}\nbuffer_load_dwordx4 v[{8+4*i}:{11+4*i}], v2, s[28:31], s15 offen")
    epi(a, name, 4)

def touch(name, stride, n):
    a = Asm(); pro(a)
    a(f"""
    v_mul_u32_u24 v2, {stride}, v2
    s_lshr_b32 s14, s2, 3
    s_and_b32 s40, s14, 1
    s_lshl_b32 s40, s40, 2
    s_add_u32 s40, s40, s3
    s_mul_i32 s40, s40, {n*64*stride}
L_loop:
    s_barrier
    s_memtime s[16:17]
    s_waitcnt lgkmcnt(0)
    """)
    for i in range(n):
        a(f"s_add_u32 s15, s40, {i*64*stride}\nbuffer_load_dword v{8+i}, v2, s[28:31], s15 offen")
    epi(a, name, 4)

names = []
for nm, args in {"ord_none": (2, 1, 8, 4), "ord_d2": (2, 16, 8, 4), "ord_d4": (4, 32, 8, 4), "ord_d8": (8, 64, 8, 4), "ord_d2_lat": (2, 16, 1, 4), "ord_none_lat": (2, 1, 1, 4), "ord_d8_lat": (8, 64, 1, 4)}.items():
    order(nm, *args); names.append(nm)
for k in ("r32", "r16", "q64", "q128"):
    strided("str_" + k, k); names.append("str_" + k)
for s in (64, 128, 256):
    touch(f"touch_{s}", s, 32); names.append(f"touch_{s}")
open("b6_names.txt", "w").write("\n".join(names))
```

```python
from asmlib import *
from b6_gen import pro
def make(name, seq, gap):
    a = Asm(); pro(a)
    a(f"""
    v_lshlrev_b32 v2, 4, v2
    s_lshr_b32 s14, s2, 3
    s_and_b32 s40, s14, 15
    s_lshl_b32 s40, s40, 2
    s_add_u32 s40, s40, s3
    s_lshl_b32 s40, s40, 15
    s_lshl_b32 s41, s2, 2
    s_add_u32 s41, s41, s3
    s_lshl_b32 s41, s41, 14
    s_add_u32 s41, s41, 0x6000000
    s_lshl_b32 s12, s12, 1
    s_lshl_b32 s26, s3, 15
L_loop:
    s_and_b32 s42, s13, 7
    s_mul_i32 s42, s42, 0x400000
    s_add_u32 s43, s42, s40
    s_barrier
    s_memtime s[48:49]
    """)
    for i, c in enumerate(seq):
        if c == "l": a(f"s_add_u32 m0, s26, {1024*i}\ns_add_u32 s15, s43, {i*1024}\nbuffer_load_dwordx4 v2, s[28:31], s15 offen sc1 lds")
        elif c == "s": a(f"s_add_u32 s15, s41, {i*1024 % 16384}\nbuffer_store_dwordx4 v[4:7], v2, s[28:31], s15 offen sc1")
        elif c == "p": a(f"s_add_u32 s15, s41, {i*1024 % 16384}\nbuffer_store_dwordx4 v[4:7], v2, s[28:31], s15 offen")
        a(f"s_memtime s[{50+2*i}:{51+2*i}]")
        for m in range(gap): a(f"v_mfma_f32_16x16x32_bf16 a[{4*m}:{4*m+3}], v[4:7], v[4:7], a[{4*m}:{4*m+3}]")
    n = len(seq)
    a(f"s_waitcnt vmcnt(0)\ns_memtime s[{50+2*n}:{51+2*n}]\ns_waitcnt lgkmcnt(0)\nv_mov_b32 v1, 0")
    for i in range(n + 1):
        a(f"s_sub_u32 s20, s{50+2*i}, s48\nv_mov_b32 v8, s20\nbuffer_store_dword v8, v1, s[8:11], s12 offen offset:{4*i}")
    a("""s_add_u32 s13, s13, 1
    s_waitcnt vmcnt(0)
    s_cmp_lt_u32 s13, 12
    s_cbranch_scc1 L_loop
    s_endpgm""")
    a(RODATA); a(descriptor("b_kernel", 256, 64))
    open(f"b22_{name}.s", "w").write(a.text())
cfg = {"l16": ("l" * 16, 0), "s6": ("s" * 6, 0), "mix": ("llsllsllsllsllsllsllll", 0), "l10s4_g6": ("l" * 10 + "ssss" + "----", 6), "l7sls_g6": ("lllllllslslslss---", 6),
       "s4_g6": ("ssss----", 6), "l10p4_g6": ("l" * 10 + "pppp" + "----", 6), "l10_g6": ("l" * 10 + "--------", 6)}
for k, v in cfg.items(): make(k, *v)
open("b22_names.txt", "w").write("\n".join(f"{k} {len(v[0])}" for k, v in cfg.items()))
```
